```python
import torch

def _softmax(x, axis=-1):
    return torch.softmax(x, dim=axis)

def _gelu(x):
    return torch.nn.functional.gelu(x, approximate='tanh')

def _silu(x):
    return torch.nn.functional.silu(x)

def _sigmoid(x):
    return torch.sigmoid(x)

def _layernorm(x, axis=-1, eps=1e-05):
    m = x.mean(dim=axis, keepdim=True)
    v = x.var(dim=axis, keepdim=True, unbiased=False)
    return (x - m) / torch.sqrt(v + eps)

def _scatter_add(tgt, idx, src, axis=0):
    return tgt.clone().index_add_(axis, idx, src)

def _segment_sum(src, seg, n):
    out = torch.zeros((n,) + src.shape[1:], dtype=src.dtype)
    return out.index_add_(0, seg, src)

def _pad(x, pw):
    flat = tuple((v for pair in reversed(pw) for v in pair))
    return torch.nn.functional.pad(x, flat)
kernel_name = 'recurrent_scan__memory_aug_recurrent_mem_tr__mixer_token_mlp__prompt'

def setup_inputs():

    _w = lambda a: (lambda t: t.to(torch.bfloat16) if t.is_floating_point() else t)(torch.as_tensor(a))

    def _A_setup():
        B, S, Dm = (1, 2048, 1024)
        H, Dh = (32, 128)
        M, seg = (8, 32)
        seg = min(seg, S)
        S = S // seg * seg
        return {'x': _w((lambda *s: torch.randn(*s, dtype=torch.bfloat16) * 0.05)(B, S, Dm)), 'mem0': _w((lambda *s: torch.randn(*s, dtype=torch.bfloat16) * 0.8)(B, M, Dm)), 'Wq': _w((lambda *s: torch.randn(*s, dtype=torch.bfloat16) * 1.6)(Dm, H, Dh) * Dm ** (-0.5)), 'Wk': _w((lambda *s: torch.randn(*s, dtype=torch.bfloat16) * 1.6)(Dm, H, Dh) * Dm ** (-0.5)), 'Wv': _w((lambda *s: torch.randn(*s, dtype=torch.bfloat16) * 0.8)(Dm, H, Dh) * Dm ** (-0.5)), 'Wo': _w((lambda *s: torch.randn(*s, dtype=torch.bfloat16) * 0.8)(H, Dh, Dm) * (H * Dh) ** (-0.5)), 'seg_len': seg}
    _A_in = _A_setup()

    def _B_setup():
        B, S, D, F = (1, 2048, 1024, 3584)
        return {'x': _w((lambda *s: torch.randn(*s, dtype=torch.bfloat16) * 0.05)(B, S, D)), 'w1': _w((lambda *s: torch.randn(*s, dtype=torch.bfloat16) * 0.8)(S, F) * S ** (-0.5)), 'b1': _w((lambda *s: torch.randn(*s, dtype=torch.bfloat16) * 12.8)(F) * 0.02), 'w2': _w((lambda *s: torch.randn(*s, dtype=torch.bfloat16) * 0.2)(F, S) * F ** (-0.5)), 'b2': _w((lambda *s: torch.randn(*s, dtype=torch.bfloat16) * 1.6)(S) * 0.02)}
    _B_in = _B_setup()
    return {'A_x': _A_in['x'], 'A_mem0': _A_in['mem0'], 'A_Wq': _A_in['Wq'], 'A_Wk': _A_in['Wk'], 'A_Wv': _A_in['Wv'], 'A_Wo': _A_in['Wo'], 'A_seg_len': _A_in['seg_len'], 'B_x': _B_in['x'], 'B_w1': _B_in['w1'], 'B_b1': _B_in['b1'], 'B_w2': _B_in['w2'], 'B_b2': _B_in['b2']}

def reference(A_x, A_mem0, A_Wq, A_Wk, A_Wv, A_Wo, A_seg_len, B_x, B_w1, B_b1, B_w2, B_b2):

    def _A_ref(x, mem0, Wq, Wk, Wv, Wo, seg_len):
        B, S, Dm = x.shape
        H, Dh = (Wq.shape[1], Wq.shape[2])
        M = mem0.shape[1]
        scale = Dh ** (-0.5)
        n_seg = S // seg_len
        L = M + seg_len
        idx = torch.arange(L)
        mask = (idx[:, None] < M) | (idx[:, None] >= idx[None, :])
        mem = mem0
        outs = []
        for s in range(n_seg):
            xs = x[:, s * seg_len:(s + 1) * seg_len, :].clone()
            h = torch.concatenate([mem, xs], axis=1)
            q = torch.einsum('btd,dhe->bhte', h, Wq)
            k = torch.einsum('btd,dhe->bhte', h, Wk)
            v = torch.einsum('btd,dhe->bhte', h, Wv)
            scores = torch.einsum('bhqe,bhke->bhqk', q, k) * scale
            scores = torch.where(mask[None, None], scores, -1000000000.0)
            p = _softmax(scores, axis=-1)
            o = torch.einsum('bhqk,bhke->bhqe', p, v)
            o = torch.einsum('bhte,hed->btd', o, Wo)
            mem = o[:, :M, :].clone()
            outs.append(o[:, M:, :])
        return torch.concatenate(outs, axis=1)

    def _B_ref(x, w1, b1, w2, b2):
        B, S, D = x.shape
        h = _layernorm(x, axis=-1)
        u = torch.einsum('bsd,sf->bdf', h, w1) + b1
        u = _gelu(u)
        y = torch.einsum('bdf,fs->bds', u, w2) + b2
        return (lambda x, *d: x.permute(*d))(y, 0, 2, 1)
    x = A_x
    xn = _layernorm(x, axis=-1)
    s = _A_ref(xn, A_mem0, A_Wq, A_Wk, A_Wv, A_Wo, A_seg_len)
    g = _silu(_B_ref(xn, B_w1, B_b1, B_w2, B_b2))
    return x + s * g
```

```python
import re

def v(i, n=1):
    return f"v{i}" if n == 1 else f"v[{i}:{i+n-1}]"
def a(i, n=1):
    return f"a{i}" if n == 1 else f"a[{i}:{i+n-1}]"
def s(i, n=1):
    return f"s{i}" if n == 1 else f"s[{i}:{i+n-1}]"

_REG = re.compile(r"^(-|abs\()?([vas])(\d+)\)?$")
_RNG = re.compile(r"^(-)?([vas])\[(\d+):(\d+)\]$")

def regs_of(tok):
    tok = tok.strip()
    m = _REG.match(tok)
    if m: return {(m.group(2), int(m.group(3)))}
    m = _RNG.match(tok)
    if m: return {(m.group(2), i) for i in range(int(m.group(3)), int(m.group(4)) + 1)}
    if tok in ("vcc", "vcc_lo", "vcc_hi"): return {("vcc", 0)}
    if tok == "m0": return {("m0", 0)}
    if tok in ("exec", "exec_lo", "exec_hi"): return {("exec", 0)}
    return set()

TRANS = ("v_exp_f32", "v_log_f32", "v_rcp_f32", "v_rsq_f32", "v_sqrt_f32", "v_sin_f32", "v_cos_f32")

def mfma_passes(op):
    if "32x32x16" in op or "32x32x8" in op or "32x32x32" in op: return 8
    if "16x16x32" in op or "16x16x16" in op or "16x16x64" in op: return 4
    return 16

class Ins:
    __slots__ = ("op", "ops", "mods", "text", "cls", "w", "r", "dpp", "srcc", "passes", "states")

def classify(text):
    I = Ins()
    I.text = text
    t = text.split(";")[0].strip()
    parts = t.split(None, 1)
    op = parts[0]
    rest = parts[1] if len(parts) > 1 else ""
    toks = [x.strip() for x in rest.split(",")] if rest else []
    ops = []
    mods = ""
    for i, x in enumerate(toks):
        sp = x.split()
        if not sp: continue
        ops.append(sp[0])
        if len(sp) > 1: mods += " " + " ".join(sp[1:])
    I.op, I.ops, I.mods = op, ops, mods
    I.w, I.r, I.dpp, I.srcc, I.passes, I.states = set(), set(), False, set(), 0, 1
    if op == "s_nop":
        I.cls = "nop"; I.states = int(ops[0], 0) + 1; return I
    if op.startswith("v_mfma") or op.startswith("v_smfmac"):
        I.cls = "mfma"; I.passes = mfma_passes(op)
        I.w = regs_of(ops[0]); I.r = regs_of(ops[1]) | regs_of(ops[2])
        if op.startswith("v_smfmac"):
            I.srcc = regs_of(ops[0]); I.r |= regs_of(ops[3])
        else:
            I.srcc = regs_of(ops[3])
        return I
    if op.startswith("v_"):
        I.cls = "valu"
        I.dpp = ("_dpp" in op) or ("row_" in mods) or ("quad_perm" in mods)
        if op.startswith("v_cmp"):
            I.w = regs_of(ops[0])
            for x in ops[1:]: I.r |= regs_of(x)
            if op.startswith("v_cmpx"): I.w |= {("exec", 0)}
        elif op.startswith("v_permlane") and "swap" in op:
            I.w = regs_of(ops[0]) | regs_of(ops[1]); I.r = set(I.w); I.cls = "permlane"
        elif op in ("v_readfirstlane_b32", "v_readlane_b32"):
            I.w = regs_of(ops[0]); I.r = regs_of(ops[1]); I.cls = "readlane"
        elif op.startswith("v_add_co") or op.startswith("v_sub_co") or op.startswith("v_addc_co") or op.startswith("v_subb_co"):
            I.w = regs_of(ops[0]) | regs_of(ops[1])
            for x in ops[2:]: I.r |= regs_of(x)
        else:
            I.w = regs_of(ops[0])
            for x in ops[1:]: I.r |= regs_of(x)
            if op.startswith("v_fmac") or op.startswith("v_pk_fmac") or I.dpp or op.startswith("v_dot2c"):
                I.r |= I.w
            if op.startswith("v_cndmask") and len(ops) == 3: I.r |= {("vcc", 0)}
        return I
    if op.startswith("buffer_") or op.startswith("global_") or op.startswith("flat_"):
        I.cls = "vmem"
        isload = "load" in op
        lds = (" lds" in (" " + mods)) or ("load_lds" in op)
        if op in ("buffer_inv", "buffer_wbl2"): return I
        if isload and not lds:
            I.w = regs_of(ops[0])
            for x in ops[1:]: I.r |= regs_of(x)
        else:
            for x in ops: I.r |= regs_of(x)
            if lds: I.r |= {("m0", 0)}
            if "atomic" in op and "sc0" in mods: I.w = regs_of(ops[0])
        return I
    if op.startswith("ds_"):
        I.cls = "ds"
        if op.startswith("ds_read") or op.startswith("ds_bpermute") or op.startswith("ds_permute") or op.startswith("ds_swizzle"):
            I.w = regs_of(ops[0])
            for x in ops[1:]: I.r |= regs_of(x)
        else:
            for x in ops: I.r |= regs_of(x)
        return I
    if op.startswith("s_"):
        I.cls = "salu"
        if op.startswith("s_cmp") or op.startswith("s_cbranch") or op in ("s_branch", "s_barrier", "s_waitcnt", "s_endpgm", "s_setprio", "s_sleep"):
            for x in ops: I.r |= regs_of(x)
        else:
            if ops: I.w = regs_of(ops[0])
            for x in ops[1:]: I.r |= regs_of(x)
            if "saveexec" in op: I.w |= {("exec", 0)}
        return I
    I.cls = "other"
    return I

def is_vec(rset):
    return {x for x in rset if x[0] in ("v", "a")}

def need(prod, cons):
    n = 0
    pw = prod.w
    if prod.cls in ("valu", "permlane", "readlane"):
        pv = is_vec(pw)
        if pv:
            if cons.cls == "mfma" and pv & (cons.r | cons.srcc): n = max(n, 2)
            if cons.cls == "valu" and cons.dpp and pv & cons.r: n = max(n, 2)
            if cons.cls == "permlane" and pv & cons.r: n = max(n, 2)
            if cons.cls == "readlane" and pv & cons.r: n = max(n, 1)
            if prod.op in TRANS and cons.cls in ("valu", "permlane", "readlane") and cons.op not in TRANS and pv & cons.r: n = max(n, 1)
        if pv and prod.op.startswith("v_dot"):
            if pv & (cons.r | cons.w):
                same_c = cons.op == prod.op and len(cons.ops) == 4 and (regs_of(cons.ops[3]) & pv) and not ((regs_of(cons.ops[1]) | regs_of(cons.ops[2])) & pv)
                if not same_c: n = max(n, 3)
        ps = {x for x in pw if x[0] in ("s", "vcc")}
        if ps:
            if cons.cls in ("valu", "permlane") and ps & cons.r: n = max(n, 2)
            if cons.cls == "readlane" and ps & cons.r: n = max(n, 4)
            if cons.cls == "vmem" and ps & cons.r: n = max(n, 5)
            if cons.cls == "salu" and ps & cons.r: n = max(n, 4)
        if ("exec", 0) in pw:
            if cons.cls == "mfma": n = max(n, 4)
            if cons.cls == "valu" and cons.dpp: n = max(n, 5)
            if cons.cls in ("readlane", "permlane"): n = max(n, 4)
    if prod.cls == "mfma":
        P = prod.passes
        tab_rw = {2: 5, 4: 8, 8: 12, 16: 20}[P]
        tab_c = {2: 4, 4: 6, 8: 10, 16: 18}[P]
        tab_war = {2: 1, 4: 3, 8: 7, 16: 15}[P]
        if cons.cls == "mfma":
            if pw & cons.r: n = max(n, tab_rw)
            if pw & cons.srcc:
                same = (cons.srcc == pw and cons.op == prod.op)
                if not same: n = max(n, tab_c)
            if (pw & cons.w) and not (cons.srcc == pw and cons.op == prod.op) and not (pw & cons.srcc):
                n = max(n, tab_rw)
        else:
            if pw & (cons.r | cons.w): n = max(n, tab_rw)
            if cons.cls in ("valu", "permlane") and (prod.srcc & cons.w): n = max(n, tab_war)
    if prod.cls == "salu" and ("m0", 0) in pw and cons.cls == "vmem" and ("m0", 0) in cons.r: n = max(n, 1)
    if prod.cls == "salu" and ("exec", 0) in pw and cons.cls == "valu" and cons.dpp: n = max(n, 0)
    if prod.cls == "vmem" and ("store" in prod.op) and ("x4" in prod.op or "x3" in prod.op):
        if cons.cls in ("valu", "permlane", "readlane") and (is_vec(prod.r) & cons.w): n = max(n, 2)
    return n

class Asm:
    def __init__(self):
        self.lines = []
        self.hist = []
        self.pos = 0
        self.nlabel = 0
        self.auto = True
        self.mfma_free = 0
    def raw(self, text):
        self.lines.append(text)
    def comment(self, text):
        self.lines.append("  ; " + text)
    def label(self, name):
        self.lines.append(name + ":")
    def newlabel(self, base="L"):
        self.nlabel += 1
        return f"{base}_{self.nlabel}"
    def i(self, text):
        I = classify(text)
        if I.cls == "mfma" and self.pos < self.mfma_free:
            self.pos = self.mfma_free
        if self.auto:
            req = 0
            for (P, ppos) in self.hist:
                d = self.pos - ppos - P.states
                nn = need(P, I)
                if nn > d: req = max(req, nn - d)
            while req > 0:
                k = min(req, 16)
                self.lines.append(f"  s_nop {k-1}")
                self.pos += k
                req -= k
        self.lines.append("  " + text)
        if I.cls == "mfma":
            self.mfma_free = self.pos + I.passes
        self.hist.append((I, self.pos))
        self.pos += I.states
        while self.hist and self.pos - self.hist[0][1] > 40:
            self.hist.pop(0)
    def __call__(self, text):
        for ln in text.split("\n"):
            ln = ln.strip()
            if not ln: continue
            if ln.startswith(";"): self.lines.append("  " + ln)
            elif ln.endswith(":"): self.lines.append(ln)
            elif ln.startswith("."): self.lines.append(ln)
            else: self.i(ln)
    def fence(self, n=20):
        req = 0
        for (P, ppos) in self.hist:
            d = self.pos - ppos - P.states
            if P.cls == "mfma":
                nn = {2: 5, 4: 8, 8: 12, 16: 20}[P.passes]
            elif P.cls in ("valu", "permlane", "readlane"):
                nn = 5 if {x for x in P.w if x[0] in ("s", "vcc", "exec")} else (3 if P.op.startswith("v_dot") else 2)
            else:
                nn = 1
            req = max(req, nn - d)
        while req > 0:
            k = min(req, 16)
            self.lines.append(f"  s_nop {k-1}")
            self.pos += k
            req -= k
        self.hist = []
        self.mfma_free = 0
    def text(self):
        return "\n".join(self.lines) + "\n"

def kernel_header(name):
    return f""".globl {name}
.p2align 8
.type {name},@function
{name}:
"""

def kernel_desc(name, vgpr=512, sgpr=102, accum=256, wgy=False):
    return f""".amdhsa_kernel {name}
  .amdhsa_next_free_vgpr {vgpr}
  .amdhsa_next_free_sgpr {sgpr}
  .amdhsa_accum_offset {accum}
  .amdhsa_group_segment_fixed_size 0
  .amdhsa_kernarg_size 120
  .amdhsa_user_sgpr_count 2
  .amdhsa_user_sgpr_kernarg_segment_ptr 1
  .amdhsa_system_sgpr_workgroup_id_x 1
.end_amdhsa_kernel
"""
```

```python
from asmgen import *
from layout import *
import struct
SCALE_LOG2E = 1.4426950408889634 / (128.0 ** 0.5)
def f32bits(x): return struct.unpack("<I", struct.pack("<f", x))[0]

def gen_att(A, R, sJ, sGq, sW, vLane, tag, nseg=4):
    sQ, sK, sV, sKM, sO, sCnt, sC, sT, sT2, sL = 64, 65, 66, 67, 68, 69, 70, 72, 73, 74
    vL16 = 2; vL16b = 3; vT = 4; vT2 = 5; vVa = 6; vMa = 7; vOa = 8
    vMaskM = 12; vTri = 16; vZero = 20
    vQ = 24
    vK = 56
    vKm = 88
    vKr = 96
    vS = 104
    vP = 124
    vO = 136
    vVf = 200
    vM = 216; vU = 218; vU2 = 219; vRi = 220
    vPk = 224
    A(f"""v_lshlrev_b32 v{vL16}, 4, v{vLane}
    v_add_u32 v{vL16b}, 4096, v{vL16}
    s_lshl_b32 s{sT}, s{sGq}, 2
    s_add_u32 s{sT}, s{sT}, s{sW}
    s_lshl_b32 s{sT2}, s{sJ}, 7
    s_add_u32 s{sT2}, s{sT2}, s{sT}
    s_lshl_b32 s{sT2}, s{sT2}, 13
    s_add_u32 s{sQ}, s{sT2}, {QX_OFF}
    s_add_u32 s{sK}, s{sT2}, {KX_OFF}
    s_add_u32 s{sV}, s{sT2}, {VX_OFF}
    s_lshl_b32 s{sT2}, s{sJ}, 7
    s_add_u32 s{sT2}, s{sT2}, s{sT}
    s_lshl_b32 s{sT2}, s{sT2}, 12
    s_add_u32 s{sKM}, s{sT2}, {KVM_OFF}
    s_lshl_b32 s{sT2}, s{sJ}, 20
    s_lshl_b32 s{sT}, s{sT}, 8
    s_add_u32 s{sO}, s{sT2}, s{sT}
    s_add_u32 s{sO}, s{sO}, {OX_OFF}
    s_lshl_b32 s{sL}, s{sW}, 14
    s_mov_b32 s{sC}, {f32bits(SCALE_LOG2E):#x}
    s_mov_b32 s{sC+1}, s{sC}""")
    A(f"""v_lshrrev_b32 v{vT}, 4, v{vLane}
    v_lshlrev_b32 v{vT}, 2, v{vT}
    v_bfe_u32 v{vT2}, v{vLane}, 2, 2
    v_add_u32 v{vT}, v{vT}, v{vT2}
    v_lshlrev_b32 v{vVa}, 4, v{vT}
    v_bfe_u32 v{vT2}, v{vLane}, 1, 1
    v_lshl_add_u32 v{vVa}, v{vT2}, 8, v{vVa}
    v_and_b32 v{vT2}, 1, v{vLane}
    v_lshl_add_u32 v{vVa}, v{vT2}, 3, v{vVa}
    v_add_u32 v{vVa}, s{sL}, v{vVa}
    v_and_b32 v{vT}, 7, v{vT}
    v_lshlrev_b32 v{vMa}, 8, v{vT}
    v_and_b32 v{vT2}, 3, v{vLane}
    v_lshl_add_u32 v{vMa}, v{vT2}, 3, v{vMa}
    v_add_u32 v{vMa}, s{sL}, v{vMa}
    v_add_u32 v{vMa}, 8192, v{vMa}""")
    A(f"""v_and_b32 v{vT}, 15, v{vLane}
    v_lshlrev_b32 v{vOa}, 13, v{vT}
    v_bfe_u32 v{vT2}, v{vLane}, 4, 1
    v_lshl_add_u32 v{vOa}, v{vT2}, 5, v{vOa}
    v_lshrrev_b32 v{vT2}, 5, v{vLane}
    v_lshl_add_u32 v{vOa}, v{vT2}, 4, v{vOa}""")
    A(f"""v_mov_b32 v{vU}, 0xff800000
    v_cmp_gt_u32 vcc, 32, v{vLane}
    v_cndmask_b32_e64 v{vMaskM}, v{vU}, 0, vcc
    v_mov_b32 v{vMaskM+1}, v{vMaskM}
    v_mov_b32 v{vMaskM+2}, v{vMaskM}
    v_mov_b32 v{vMaskM+3}, v{vMaskM}
    v_lshrrev_b32 v{vT2}, 4, v{vLane}
    v_lshlrev_b32 v{vT2}, 2, v{vT2}""")
    for r in range(4):
        A(f"v_add_u32 v{vU2}, {r}, v{vT2}")
        A(f"v_cmp_le_u32 vcc, v{vU2}, v{vT}")
        A(f"v_cndmask_b32_e64 v{vTri+r}, v{vU}, 0, vcc")
    A(f"s_mov_b32 s{sCnt}, {nseg}")
    lp = f"att_{tag}"
    A.fence()
    A.label(lp)
    A(f"s_add_u32 m0, s{sL}, 0")
    for k in range(8):
        if k == 4: A(f"s_add_u32 m0, s{sL}, 4096")
        va = vL16 if k < 4 else vL16b
        A(f"buffer_load_dwordx4 v{vL16}, {s(R,4)}, s{sV if k < 4 else sT} offen offset:{(k%4)*1024} sc1 lds" if k < 4 else
          f"buffer_load_dwordx4 v{vL16b}, {s(R,4)}, s{sV} offen offset:{(k%4)*1024} sc1 lds")
    A(f"s_add_u32 m0, s{sL}, 8192")
    A(f"s_add_u32 s{sT}, s{sKM}, 2048")
    A(f"buffer_load_dwordx4 v{vL16}, {s(R,4)}, s{sT} offen offset:0 sc1 lds")
    A(f"buffer_load_dwordx4 v{vL16}, {s(R,4)}, s{sT} offen offset:1024 sc1 lds")
    for k in range(8):
        va = vL16 if k < 4 else vL16b
        A(f"buffer_load_dwordx4 {v(vK + 4*k, 4)}, v{va}, {s(R,4)}, s{sK} offen offset:{(k%4)*1024} sc1")
    for k in range(8):
        va = vL16 if k < 4 else vL16b
        A(f"buffer_load_dwordx4 {v(vQ + 4*k, 4)}, v{va}, {s(R,4)}, s{sQ} offen offset:{(k%4)*1024} sc1")
    A(f"buffer_load_dwordx4 {v(vKm,4)}, v{vL16}, {s(R,4)}, s{sKM} offen offset:0 sc1")
    A(f"buffer_load_dwordx4 {v(vKm+4,4)}, v{vL16}, {s(R,4)}, s{sKM} offen offset:1024 sc1")
    A("s_waitcnt vmcnt(0)")
    for k in range(8):
        A(f"v_mov_b32_dpp v{vKr + k}, v{vKm + k} row_ror:8 row_mask:0xf bank_mask:0xf")
    def km(i): return v((vKm if i % 2 == 0 else vKr) + (i >> 1) * 4, 4)
    S0m, S0x, S1m, S1x0, S1x1 = vS, vS + 4, vS + 8, vS + 12, vS + 16
    def chain(dst, afn, nt, init):
        for i in range(4):
            A(f"v_mfma_f32_16x16x32_bf16 {v(dst,4)}, {afn(i)}, {v(vQ + (nt*4+i)*4, 4)}, {init if i == 0 else v(dst,4)}")
    chain(S0x, lambda i: v(vK + i*4, 4), 0, v(vTri, 4))
    chain(S1x0, lambda i: v(vK + i*4, 4), 1, "0")
    chain(S1x1, lambda i: v(vK + (4+i)*4, 4), 1, v(vTri, 4))
    chain(S0m, km, 0, v(vMaskM, 4))
    chain(S1m, km, 1, v(vMaskM, 4))
    def xl(op, reg):
        A(f"v_mov_b32 v{vU}, v{reg}")
        A(f"v_permlane32_swap_b32 v{reg}, v{vU}")
        A(f"{op} v{reg}, v{reg}, v{vU}")
        A(f"v_mov_b32 v{vU}, v{reg}")
        A(f"v_permlane16_swap_b32 v{reg}, v{vU}")
        A(f"{op} v{reg}, v{reg}, v{vU}")
    for nt, (base, n) in enumerate(((S0m, 8), (S1m, 12))):
        regs = list(range(base, base + n))
        A(f"v_max3_f32 v{vM}, v{regs[0]}, v{regs[1]}, v{regs[2]}")
        k = 3
        while k < n:
            if k + 1 < n: A(f"v_max3_f32 v{vM}, v{vM}, v{regs[k]}, v{regs[k+1]}"); k += 2
            else: A(f"v_max_f32 v{vM}, v{vM}, v{regs[k]}"); k += 1
        xl("v_max_f32", vM)
        A(f"v_mul_f32 v{vM}, s{sC}, v{vM}")
        for k in range(0, n, 2):
            A(f"v_pk_fma_f32 {v(base+k,2)}, {v(base+k,2)}, {s(sC,2)}, {v(vM,2)} op_sel_hi:[1,1,0] neg_lo:[0,0,1] neg_hi:[0,0,1]")
        for k in range(n): A(f"v_exp_f32 v{base+k}, v{base+k}")
        ri = vRi + 2*nt
        A(f"v_add_f32 v{ri}, v{base}, v{base+1}")
        for k in range(2, n): A(f"v_add_f32 v{ri}, v{ri}, v{base+k}")
        xl("v_add_f32", ri)
        A(f"v_rcp_f32 v{ri}, v{ri}")
        for k in range(0, n, 2):
            A(f"v_pk_mul_f32 {v(base+k,2)}, {v(base+k,2)}, {v(ri,2)} op_sel_hi:[1,0]")
        P = vP + 6*nt
        A(f"v_cvt_pk_bf16_f32 v{P+4}, v{base}, v{base+1}")
        A(f"v_cvt_pk_bf16_f32 v{P+5}, v{base+2}, v{base+3}")
        A(f"v_cvt_pk_bf16_f32 v{P}, v{base+4}, v{base+5}")
        A(f"v_cvt_pk_bf16_f32 v{P+1}, v{base+6}, v{base+7}")
        if nt == 0:
            A(f"v_mov_b32 v{P+2}, 0")
            A(f"v_mov_b32 v{P+3}, 0")
        else:
            A(f"v_cvt_pk_bf16_f32 v{P+2}, v{base+8}, v{base+9}")
            A(f"v_cvt_pk_bf16_f32 v{P+3}, v{base+10}, v{base+11}")
    def vreads(et):
        F = vVf + (et & 1) * 8
        off = (et >> 1) * 1024 + (et & 1) * 512
        A(f"ds_read_b64_tr_b16 {v(F,2)}, v{vVa} offset:{off}")
        A(f"ds_read_b64_tr_b16 {v(F+2,2)}, v{vVa} offset:{off + 4096}")
        A(f"ds_read_b64_tr_b16 {v(F+4,2)}, v{vMa} offset:{et*32}")
    vreads(0)
    for et in range(8):
        if et < 7:
            vreads(et + 1)
            A("s_waitcnt lgkmcnt(3)")
        else:
            A("s_waitcnt lgkmcnt(0)")
        F = vVf + (et & 1) * 8
        for nt in range(2):
            A(f"v_mfma_f32_16x16x32_bf16 {v(vO + (et*2 + nt)*4, 4)}, {v(F,4)}, {v(vP + 6*nt, 4)}, 0")
        for nt in range(2):
            O = vO + (et*2 + nt)*4
            A(f"v_mfma_f32_16x16x16_bf16 {v(O,4)}, {v(F+4,2)}, {v(vP + 6*nt + 4, 2)}, {v(O,4)}")
    for nt in range(2):
        for tp in range(4):
            O0 = vO + ((2*tp)*2 + nt)*4; O1 = vO + ((2*tp+1)*2 + nt)*4
            Pk = vPk + (tp & 1) * 4
            A(f"v_cvt_pk_bf16_f32 v{Pk}, v{O0}, v{O0+1}")
            A(f"v_cvt_pk_bf16_f32 v{Pk+1}, v{O0+2}, v{O0+3}")
            A(f"v_cvt_pk_bf16_f32 v{Pk+2}, v{O1}, v{O1+1}")
            A(f"v_cvt_pk_bf16_f32 v{Pk+3}, v{O1+2}, v{O1+3}")
            A(f"v_permlane16_swap_b32 v{Pk}, v{Pk+2}")
            A(f"v_permlane16_swap_b32 v{Pk+1}, v{Pk+3}")
            A(f"buffer_store_dwordx4 {v(Pk,4)}, v{vOa}, {s(R,4)}, s{sO} offen offset:{tp*64} sc1")
        if nt == 0: A(f"s_add_u32 s{sO}, s{sO}, {16*8192}")
    A(f"""s_add_u32 s{sO}, s{sO}, {16*8192}
    s_add_u32 s{sQ}, s{sQ}, {32*8192}
    s_add_u32 s{sK}, s{sK}, {32*8192}
    s_add_u32 s{sV}, s{sV}, {32*8192}
    s_add_u32 s{sKM}, s{sKM}, {32*4096}
    s_sub_u32 s{sCnt}, s{sCnt}, 1
    s_cmp_lg_u32 s{sCnt}, 0""")
    A.fence()
    A(f"s_cbranch_scc1 {lp}")
```

```python
from asmgen import *
from layout import *
FL_KV, FL_Q, FL_U, FL_G, FL_ATT, FL_KM, FL_XCC = 0, 16, 32, 40, 48, 64, 192
import struct
SCALE_LOG2E = 1.4426950408889634 / (128.0 ** 0.5)
def f32bits(x): return struct.unpack("<I", struct.pack("<f", x))[0]

class ChainCfg:
    nsteps = 64
    fast_local = True
    spin_limit = 1 << 22
    stamp_pair = None
    kv_flags = False
    fake_pf = False
    no_pf = False
    xwait = 0
    await_ = None
    bwait = 0
    split_v = False
    dual = False
    km_flags = False

def gen_chain(A, cfg, s_g, s_c, exit_label, s_fast=None):
    LOC = "" if cfg.fast_local else " sc1"
    sWq, sWk, sWv, sWo, sM0, sWs, sDbg = 4, 6, 8, 10, 12, 14, 16
    sW = 20; sHH = 21; sQD = 22; sStep = 23; sTmp = 24; sTmp2 = 25; sSpin = 26; sSlot = 27
    R = 28
    sA = 32; sAw = 33; sRA = 34; sX = 35; sXr = 36; sRX = 37; sB = 38; sBw = 39; sRB = 40; sBwCur = 41
    cA = 42; cAw = 43; cX = 44; cXr = 45; cB = 46; cBw = 47
    sKX = 48; sVX = 49; sKVM = 50
    sP = 52; sC = 54; sOffW = 56; sOffO = 57
    sLoM = 58
    sSt = 60
    sFl = 51
    vLane = 1; vT = 2; vT2 = 3; vL16 = 4; vQW = 5; vQR = 6; vPA0 = 7; vPA1 = 8; vKVM = 9
    vRW = 10; vRR = 11
    vXW = 15; vXR = 16; vXR2 = 17; vBW = 18; vIdx = 19; vSent = 20; vL16b = 21; vSP = 22; vKVMk = 23
    vMask = 24
    vMem = 28
    vAcc = 44
    vKs = 68
    vXq = 76
    vYq = 80
    vKeep = 84
    vVx = 88
    vZx = 120
    vZt = 136
    vL = 168
    vLv = 192
    vS = 200
    vZm = 212
    vZmP = 228
    vP = 236
    vM = 244; vSum = 245; vRi = 246; vU = 248; vU2 = 249
    vOne = 250; vOneH = 251
    vOut = vZt

    def bl(op, dst, voff, soff, imm=0, fl=" sc1"):
        return f"{op} {dst}, v{voff}, {s(R,4)}, s{soff} offen offset:{imm}{fl}"

    A(f"""s_load_dwordx2 {s(sWq,2)}, s[0:1], {KA['Wq']}
    s_load_dwordx2 {s(sWk,2)}, s[0:1], {KA['Wk']}
    s_load_dwordx2 {s(sWv,2)}, s[0:1], {KA['Wv']}
    s_load_dwordx2 {s(sWo,2)}, s[0:1], {KA['Wo']}
    s_load_dwordx2 {s(sM0,2)}, s[0:1], {KA['mem0']}
    s_load_dwordx2 {s(sWs,2)}, s[0:1], {KA['ws']}
    s_load_dwordx2 {s(sDbg,2)}, s[0:1], {KA['dbg']}
    v_lshrrev_b32 v{vT}, 6, v0
    v_and_b32 v{vLane}, 63, v0
    v_readfirstlane_b32 s{sW}, v{vT}
    s_lshr_b32 s{sHH}, s{s_c}, 2
    s_and_b32 s{sQD}, s{s_c}, 3
    v_lshlrev_b32 v{vL16}, 4, v{vLane}
    v_add_u32 v{vL16b}, 4096, v{vL16}
    s_waitcnt lgkmcnt(0)
    s_mov_b32 s{R}, s{sWs}
    s_mov_b32 s{R+1}, s{sWs+1}
    s_mov_b32 s{R+2}, {WS_BYTES}
    s_mov_b32 s{R+3}, 0x20000""")

    sLds = sTmp2
    A(f"s_lshl_b32 s{sLds}, s{sW}, 15")
    vWo_ = vAcc; vWoO = vAcc + 1; vTr = vAcc + 2; vTr2 = vAcc + 3
    A(f"""v_lshrrev_b32 v{vT}, 2, v{vLane}
    v_lshlrev_b32 v{vT}, 13, v{vT}
    v_and_b32 v{vT2}, 3, v{vLane}
    v_lshlrev_b32 v{vT2}, 4, v{vT2}
    v_add_u32 v{vWo_}, v{vT}, v{vT2}
    v_lshrrev_b32 v{vT}, 3, v{vLane}
    v_lshlrev_b32 v{vT}, 11, v{vT}
    v_and_b32 v{vT2}, 7, v{vLane}
    v_lshlrev_b32 v{vT2}, 4, v{vT2}
    v_add_u32 v{vWoO}, v{vT}, v{vT2}
    v_lshrrev_b32 v{vT}, 4, v{vLane}
    v_lshlrev_b32 v{vT}, 3, v{vT}
    v_bfe_u32 v{vT2}, v{vLane}, 2, 2
    v_add_u32 v{vT}, v{vT}, v{vT2}
    v_and_b32 v{vT2}, 3, v{vLane}
    v_lshlrev_b32 v{vT2}, 3, v{vT2}
    v_lshlrev_b32 v{vTr}, 6, v{vT}
    v_add_u32 v{vTr}, v{vTr}, v{vT2}
    v_add_u32 v{vTr}, s{sLds}, v{vTr}
    v_lshlrev_b32 v{vTr2}, 7, v{vT}
    v_add_u32 v{vTr2}, v{vTr2}, v{vT2}
    v_add_u32 v{vTr2}, s{sLds}, v{vTr2}
    s_lshl_b32 s{sTmp}, s{s_g}, 2
    s_add_u32 s{sTmp}, s{sTmp}, s{sHH}
    s_lshl_b32 s{sTmp}, s{sTmp}, 8
    s_lshl_b32 s{sOffW}, s{sQD}, 6
    s_add_u32 s{sOffW}, s{sOffW}, s{sTmp}
    s_lshl_b32 s{sTmp}, s{sW}, 21
    s_add_u32 s{sOffW}, s{sOffW}, s{sTmp}
    s_lshl_b32 s{sTmp}, s{s_g}, 2
    s_add_u32 s{sTmp}, s{sTmp}, s{sW}
    s_lshl_b32 s{sTmp}, s{sTmp}, 18
    s_lshl_b32 s{sOffO}, s{s_c}, 7
    s_add_u32 s{sOffO}, s{sOffO}, s{sTmp}""")
    def dma_piece(p):
        base = [sWq, sWk, sWv, sWo][p]
        off = sOffW if p < 3 else sOffO
        step = 16 * 8192 if p < 3 else 8 * 2048
        vo = vWo_ if p < 3 else vWoO
        A(f"""s_add_u32 s{sP}, s{base}, s{off}
        s_addc_u32 s{sP+1}, s{base+1}, 0
        s_add_u32 m0, s{sLds}, {(p & 1) * 16384}""")
        for i in range(16):
            A(f"global_load_lds_dwordx4 v{vo}, {s(sP,2)}")
            if i < 15:
                A(f"""s_add_u32 s{sP}, s{sP}, {step}
                s_addc_u32 s{sP+1}, s{sP+1}, 0
                s_add_u32 m0, m0, 1024""")
    def tr_piece(p):
        reg0 = (p & 1) * 16384
        if p < 3:
            for u in range(2):
                t = 2 * p + u
                for kb in range(4):
                    for q in range(4):
                        off = reg0 + (64 * kb + 32 * (q >> 1) + 4 * (q & 1)) * 64 + u * 32
                        A(f"ds_read_b64_tr_b16 {a((t*4+kb)*8 + 2*q, 2)}, v{vTr} offset:{off}")
                    if kb % 2 == 1: A("s_waitcnt lgkmcnt(0)")
        else:
            for ct in range(4):
                for b in range(2):
                    for q in range(4):
                        off = reg0 + (64 * b + 32 * (q >> 1) + 4 * (q & 1)) * 128 + ct * 32
                        A(f"ds_read_b64_tr_b16 {a(192 + (ct*2+b)*8 + 2*q, 2)}, v{vTr2} offset:{off}")
                A("s_waitcnt lgkmcnt(0)")
    dma_piece(0); dma_piece(1)
    A("s_waitcnt vmcnt(16)"); tr_piece(0)
    dma_piece(2)
    A("s_waitcnt vmcnt(16)"); tr_piece(1)
    dma_piece(3)
    A("s_waitcnt vmcnt(16)"); tr_piece(2)
    A("s_waitcnt vmcnt(0)"); tr_piece(3)
    A("s_barrier")

    RB = 16384
    A(f"""v_bfe_u32 v{vT}, v{vLane}, 4, 1
    v_lshlrev_b32 v{vT}, 2, v{vT}
    v_lshrrev_b32 v{vT2}, 5, v{vLane}
    v_add_u32 v{vT}, v{vT}, v{vT2}
    s_lshl_b32 s{sTmp}, s{sW}, 3
    v_add_u32 v{vT}, s{sTmp}, v{vT}
    v_mul_u32_u24 v{vT}, 400, v{vT}
    v_and_b32 v{vT2}, 15, v{vLane}
    v_lshl_add_u32 v{vQW}, v{vT2}, 2, v{vT}""")
    l0 = A.newlabel("qr1"); l0j = A.newlabel("qrj")
    A(f"""v_and_b32 v{vT}, 7, v{vLane}
    v_mul_u32_u24 v{vT}, 400, v{vT}
    s_cmp_eq_u32 s{sW}, 0
    s_cbranch_scc0 {l0}
    v_bfe_u32 v{vT2}, v{vLane}, 3, 1
    v_lshl_add_u32 v{vT}, v{vT2}, 7, v{vT}
    v_lshrrev_b32 v{vT2}, 4, v{vLane}
    v_lshl_add_u32 v{vQR}, v{vT2}, 5, v{vT}
    s_branch {l0j}
    {l0}:
    v_lshrrev_b32 v{vT2}, 3, v{vLane}
    v_add_u32 v{vT2}, 16, v{vT2}
    v_lshl_add_u32 v{vQR}, v{vT2}, 4, v{vT}
    {l0j}:""")
    A.fence()
    A(f"""s_lshl_b32 s{sTmp}, s{sHH}, 13
    s_lshr_b32 s{sTmp2}, s{sQD}, 1
    s_lshl_b32 s{sTmp2}, s{sTmp2}, 10
    s_add_u32 s{sTmp}, s{sTmp}, s{sTmp2}
    s_and_b32 s{sTmp2}, s{sQD}, 1
    s_lshl_b32 s{sTmp2}, s{sTmp2}, 7
    v_add_u32 v{vSP}, s{sTmp2}, v{vL16}
    v_add_u32 v{vSP}, s{sTmp}, v{vSP}
    s_add_u32 s{sTmp}, s{sTmp}, 6144
    s_and_b32 s{sTmp2}, s{sQD}, 1
    s_lshl_b32 s{sTmp2}, s{sTmp2}, 1
    v_and_b32 v{vT}, 7, v{vLane}
    v_lshrrev_b32 v{vT2}, 5, v{vLane}
    v_add_u32 v{vT2}, s{sTmp2}, v{vT2}
    v_lshl_add_u32 v{vT}, v{vT2}, 4, v{vT}
    v_lshlrev_b32 v{vT}, 4, v{vT}
    v_bfe_u32 v{vT2}, v{vLane}, 3, 2
    v_lshl_add_u32 v{vT}, v{vT2}, 2, v{vT}
    v_add_u32 v{vPA0}, s{sTmp}, v{vT}
    v_add_u32 v{vPA1}, 128, v{vPA0}""")
    A(f"""s_lshl_b32 s{sTmp}, s{s_g}, 2
    s_add_u32 s{sTmp}, s{sTmp}, s{sHH}
    s_lshl_b32 s{sTmp}, s{sTmp}, 12
    s_lshr_b32 s{sTmp2}, s{sQD}, 1
    s_lshl_b32 s{sTmp2}, s{sTmp2}, 10
    s_add_u32 s{sP}, s{sTmp}, s{sTmp2}
    s_and_b32 s{sTmp2}, s{sQD}, 1
    s_lshl_b32 s{sTmp2}, s{sTmp2}, 7
    s_add_u32 s{sP}, s{sP}, s{sTmp2}
    v_and_b32 v{vT}, 0x37, v{vLane}
    v_lshlrev_b32 v{vT}, 4, v{vT}
    v_add_u32 v{vKVMk}, s{sP}, v{vT}
    s_lshl_b32 s{sTmp2}, s{sQD}, 6
    s_add_u32 s{sTmp}, s{sTmp}, s{sTmp2}
    s_add_u32 s{sTmp}, s{sTmp}, 2048
    v_and_b32 v{vT}, 7, v{vLane}
    v_lshlrev_b32 v{vT}, 8, v{vT}
    v_lshrrev_b32 v{vT2}, 3, v{vLane}
    v_lshl_add_u32 v{vT}, v{vT2}, 3, v{vT}
    v_add_u32 v{vKVM}, s{sTmp}, v{vT}""")
    A(f"""v_and_b32 v{vT}, 7, v{vLane}
    s_lshl_b32 s{sTmp}, s{sW}, 3
    v_add_u32 v{vT}, s{sTmp}, v{vT}
    v_mul_u32_u24 v{vT}, 272, v{vT}
    v_bfe_u32 v{vT2}, v{vLane}, 3, 1
    v_lshl_add_u32 v{vT}, v{vT2}, 7, v{vT}
    v_lshrrev_b32 v{vT2}, 4, v{vLane}
    v_lshl_add_u32 v{vT}, v{vT2}, 4, v{vT}
    v_add_u32 v{vRW}, {RB}, v{vT}
    v_bfe_u32 v{vT}, v0, 1, 3
    v_mul_u32_u24 v{vT}, 272, v{vT}
    v_bfe_u32 v{vT2}, v0, 5, 2
    v_lshl_add_u32 v{vT}, v{vT2}, 6, v{vT}
    v_and_b32 v{vT2}, 1, v0
    v_lshl_add_u32 v{vT}, v{vT2}, 5, v{vT}
    v_bfe_u32 v{vT2}, v0, 4, 1
    v_lshl_add_u32 v{vT}, v{vT2}, 3, v{vT}
    v_add_u32 v{vRR}, {RB}, v{vT}
    v_add_u32 v{vRR+1}, {RB + 2176}, v{vT}
    v_add_u32 v{vRR+2}, {RB + 2*2176}, v{vT}
    v_add_u32 v{vRR+3}, {RB + 3*2176}, v{vT}
    v_lshlrev_b32 v{vXW}, 3, v0
    v_lshlrev_b32 v{vXR}, 2, v0
    v_add_u32 v{vXR2}, 4096, v{vXR}
    s_lshl_b32 s{sTmp}, s{s_c}, 10
    v_add_u32 v{vBW}, s{sTmp}, v{vXR}
    v_and_b32 v{vT}, 8, v{vLane}
    v_cmp_eq_u32 vcc, 0, v{vT}
    v_mov_b32 v{vT2}, 0xEEEE
    v_mov_b32 v{vIdx}, 0x4444
    v_cndmask_b32 v{vIdx}, v{vT2}, v{vIdx}, vcc
    s_mov_b32 s{sLoM}, 0x00ff00ff
    s_mov_b32 s{sLoM+1}, 0x00ff00ff
    v_mov_b32 v{vSent}, -1
    v_cmp_gt_u32 vcc, 32, v{vLane}
    v_mov_b32 v{vT2}, 0xff800000
    v_cndmask_b32_e64 v{vMask}, v{vT2}, 0, vcc
    v_mov_b32 v{vMask+1}, v{vMask}
    v_mov_b32 v{vMask+2}, v{vMask}
    v_mov_b32 v{vMask+3}, v{vMask}
    v_mov_b32 v{vOne}, 0x3f80
    v_mov_b32 v{vOneH}, 0x3f800000
    s_mov_b32 s{sC}, {f32bits(SCALE_LOG2E):#x}
    s_mov_b32 s{sC+1}, s{sC}""")
    A(f"""s_lshl_b32 s{cA}, s{s_g}, 15
    s_add_u32 s{cA}, s{cA}, {HOPA_OFF}
    s_lshl_b32 s{sTmp}, s{sW}, 13
    s_add_u32 s{cAw}, s{cA}, s{sTmp}
    s_lshl_b32 s{cXr}, s{s_c}, 13
    s_add_u32 s{cXr}, s{cXr}, {HOPX_OFF}
    s_lshl_b32 s{sTmp}, s{s_g}, 10
    s_add_u32 s{cX}, s{cXr}, s{sTmp}
    s_lshl_b32 s{cB}, s{s_g}, 14
    s_add_u32 s{cB}, s{cB}, {HOPB_OFF}
    s_lshl_b32 s{sTmp}, s{sW}, 12
    s_add_u32 s{cBw}, s{cB}, s{sTmp}""")

    A(f"""v_and_b32 v{vT}, 7, v{vLane}
    v_lshlrev_b32 v{vT}, 11, v{vT}
    v_lshrrev_b32 v{vT2}, 4, v{vLane}
    v_lshl_add_u32 v{vT}, v{vT2}, 5, v{vT}
    v_bfe_u32 v{vT2}, v{vLane}, 3, 1
    v_lshl_add_u32 v{vT}, v{vT2}, 2, v{vT}
    s_lshl_b32 s{sTmp}, s{sW}, 9
    v_add_u32 v{vT}, s{sTmp}, v{vT}""")
    for kb in range(4):
        for gq in range(4):
            A(f"global_load_dword v{vMem + kb*4 + gq}, v{vT}, {s(sM0,2)} offset:{kb*128 + gq*8}")
    A(f"""s_lshl_b32 s{sTmp}, s{s_g}, 2
    s_add_u32 s{sTmp2}, s{sTmp}, s{sW}
    s_lshl_b32 s{sTmp2}, s{sTmp2}, 13
    s_add_u32 s{sVX}, s{sTmp2}, {VX_OFF}
    s_add_u32 s{sTmp2}, s{sTmp}, s{sHH}
    s_lshl_b32 s{sTmp2}, s{sTmp2}, 13
    s_lshl_b32 s{sTmp}, s{sQD}, 10
    s_add_u32 s{sTmp2}, s{sTmp2}, s{sTmp}
    s_add_u32 s{sKX}, s{sTmp2}, {KX_OFF}
    s_mov_b32 s{sKVM}, {KVM_OFF}""")
    def ld_vx(k):
        va = vL16 if k < 4 else vL16b
        return bl("buffer_load_dwordx4", v(vVx + k*4, 4), va, sVX, (k % 4) * 1024)
    def ld_ks():
        return [bl("buffer_load_dwordx4", v(vKs, 4), vL16, sKX, 0),
                bl("buffer_load_dwordx4", v(vKs + 4, 4), vL16b, sKX, 0)]
    def adv_kv():
        return [f"s_add_u32 s{sVX}, s{sVX}, {32*8192}", f"s_add_u32 s{sKX}, s{sKX}, {32*8192}"]
    def bases_ops():
        return [f"s_and_b32 s{sSlot}, s{sStep}, 3",
                f"s_lshl_b32 s{sTmp}, s{sSlot}, 18",
                f"s_add_u32 s{sA}, s{cA}, s{sTmp}",
                f"s_add_u32 s{sAw}, s{cAw}, s{sTmp}",
                f"s_xor_b32 s{sTmp}, s{sTmp}, {2 << 18}",
                f"s_add_u32 s{sRA}, s{cA}, s{sTmp}",
                f"s_lshl_b32 s{sTmp}, s{sSlot}, 17",
                f"s_add_u32 s{sX}, s{cX}, s{sTmp}",
                f"s_add_u32 s{sXr}, s{cXr}, s{sTmp}",
                f"s_xor_b32 s{sTmp}, s{sTmp}, {2 << 17}",
                f"s_add_u32 s{sRX}, s{cX}, s{sTmp}",
                f"s_add_u32 s{sSlot}, s{sSlot}, 1",
                f"s_and_b32 s{sSlot}, s{sSlot}, 3",
                f"s_lshl_b32 s{sTmp}, s{sSlot}, 17",
                f"s_add_u32 s{sB}, s{cB}, s{sTmp}",
                f"s_add_u32 s{sBw}, s{cBw}, s{sTmp}",
                f"s_xor_b32 s{sTmp}, s{sTmp}, {2 << 17}",
                f"s_add_u32 s{sRB}, s{cB}, s{sTmp}"]
    assert HOPA_SLOT == 1 << 18 and HOPX_SLOT == 1 << 17 and HOPB_SLOT == 1 << 17

    def zx(fill, reload):
        fill = list(fill)
        n = 0
        for t in range(2):
            for m in range(4):
                for ct in range(4):
                    acc = vZt + (t*4 + ct)*4
                    src = "0" if m == 0 else v(acc, 4)
                    A(f"v_mfma_f32_16x16x32_bf16 {v(acc,4)}, {v(vVx + (t*4+m)*4, 4)}, {a(192 + (ct*2 + (m>>1))*8 + (m&1)*4, 4)}, {src}")
                    n += 1
                    if t == 1 and m == 1:
                        A(f"v_cvt_pk_bf16_f32 v{vZx + ct*4}, v{vZt + ct*4}, v{vZt + ct*4 + 1}")
                        A(f"v_cvt_pk_bf16_f32 v{vZx + ct*4 + 1}, v{vZt + ct*4 + 2}, v{vZt + ct*4 + 3}")
                    else:
                        for _ in range(2):
                            if fill: A(fill.pop(0))
                if reload and (t, m) != (1, 3): A(ld_vx(t*4 + m))
        for x in fill: A(x)
        if reload: A(ld_vx(7))
        for ct in range(4):
            acc = vZt + (4 + ct)*4
            A(f"v_cvt_pk_bf16_f32 v{vZx + ct*4 + 2}, v{acc}, v{acc+1}")
            A(f"v_cvt_pk_bf16_f32 v{vZx + ct*4 + 3}, v{acc+2}, v{acc+3}")
    def zero_ops():
        return [f"v_mov_b32 v{vAcc + r}, 0" for r in range(24)] + [f"v_mov_b32 v{vZm + r}, 0" for r in range(16)]

    A(f"s_mov_b32 s{sSpin}, {cfg.spin_limit}")
    vFl = 252; vZ = 253
    A(f"v_mov_b32 v{vZ}, 0")
    def kv_wait_blocking(soff_imm):
        lw = A.newlabel("kvw")
        A(f"s_mov_b32 s{sP}, {soff_imm}")
        A.label(lw)
        A(f"""buffer_load_dword v{vFl}, v{vZ}, {s(R,4)}, s{sP} offen sc1
        s_waitcnt vmcnt(0)
        v_readfirstlane_b32 s{sTmp}, v{vFl}
        s_cmp_ge_u32 s{sTmp}, 32
        s_cbranch_scc1 {lw}_ok
        s_sub_u32 s{sSpin}, s{sSpin}, 1
        s_cbranch_scc1 {exit_label}
        s_sleep 8
        s_branch {lw}
        {lw}_ok:""")
    A(f"s_mov_b32 s{sFl}, {FLAG_OFF + FL_KV * 128}")
    if cfg.kv_flags: kv_wait_blocking(FLAG_OFF + FL_KV * 128)
    for k in range(8): A(ld_vx(k))
    for x in ld_ks(): A(x)
    for x in adv_kv(): A(x)
    A(f"s_mov_b32 s{sStep}, 0")
    for x in bases_ops(): A(x)
    A("s_waitcnt vmcnt(0)")
    zx(zero_ops(), True)
    A(f"s_add_u32 s{sVX}, s{sVX}, {32*8192}")
    if cfg.stamp_pair: A(f"s_mov_b32 s{sSt+4}, 0")

    def stamp(k):
        if cfg.stamp_pair and k == cfg.stamp_pair[0]:
            A(f"s_memtime {s(sSt,2)}")
        if cfg.stamp_pair and k == cfg.stamp_pair[1]:
            A(f"s_memtime {s(sSt+2,2)}")
            A(f"s_waitcnt lgkmcnt(0)")
            A(f"s_sub_u32 s{sSt+2}, s{sSt+2}, s{sSt}")
            A(f"s_add_u32 s{sSt+4}, s{sSt+4}, s{sSt+2}")

    retries = []
    def check(regs, lab):
        r = list(regs)
        if len(r) >= 3:
            A(f"v_max3_u32 v{vU}, v{r[0]}, v{r[1]}, v{r[2]}"); k = 3
        else:
            A(f"v_max_u32 v{vU}, v{r[0]}, v{r[1]}"); k = 2
        while k < len(r):
            if k + 1 < len(r):
                A(f"v_max3_u32 v{vU}, v{vU}, v{r[k]}, v{r[k+1]}"); k += 2
            else:
                A(f"v_max_u32 v{vU}, v{vU}, v{r[k]}"); k += 1
        rl = A.newlabel("retry")
        A(f"v_cmp_eq_u32 vcc, -1, v{vU}")
        A(f"s_cbranch_vccnz {rl}")
        retries.append((rl, lab))

    def km_signal():
        A(f"""s_lshr_b32 s{sTmp}, s{sTmp}, 2
        s_lshl_b32 s{sTmp2}, s{s_g}, 4
        s_add_u32 s{sTmp}, s{sTmp}, s{sTmp2}
        s_add_u32 s{sTmp}, s{sTmp}, {FL_KM}
        s_lshl_b32 s{sTmp}, s{sTmp}, 7
        s_add_u32 s{sTmp}, s{sTmp}, {FLAG_OFF}
        v_mov_b32 v{vU}, 1
        s_mov_b64 exec, 1
        buffer_atomic_add v{vU}, v{vZ}, {s(R,4)}, s{sTmp} offen sc1
        s_mov_b64 exec, -1""")

    def post_ops(t):
        b = vAcc + t*4
        return [f"v_permlane32_swap_b32 v{b}, v{b+1}",
                f"v_permlane32_swap_b32 v{b+2}, v{b+3}",
                f"v_add_f32 v{b}, v{b}, v{b+1}",
                f"v_add_f32 v{b+2}, v{b+2}, v{b+3}",
                f"ds_write_b32 v{vQW}, v{b} offset:{t*64}",
                f"ds_write_b32 v{vQW}, v{b+2} offset:{t*64 + 800}"]
    def sm(t, kb): return f"v_smfmac_f32_16x16x64_bf16 {v(vAcc + t*4, 4)}, {v(vMem + kb*4, 4)}, {a((t*4+kb)*8, 8)}, v{vIdx}"

    def emit_loop(LOC):
        retries.clear()
        loop = A.newlabel("chain_loop")
        A.fence()
        A.label(loop)
        stamp(0)
        pend = []
        for t in range(6):
            for kb in range(4):
                A(sm(t, kb))
                if t >= 1 and kb == 1: pend += post_ops(t - 1)
                for _ in range(2):
                    if pend: A(pend.pop(0))
        for x in pend: A(x)
        for x in post_ops(5): A(x)
        stamp(10)
        A("s_waitcnt lgkmcnt(0)")
        A("s_barrier")
        stamp(11)
        if cfg.km_flags:
            lkm = A.newlabel("km_skip")
            A(f"""s_cmp_lg_u32 s{sW}, 2
            s_cbranch_scc1 {lkm}
            s_and_b32 s{sTmp}, s{sStep}, 3
            s_cmp_lg_u32 s{sTmp}, 0
            s_cbranch_scc1 {lkm}
            s_cmp_eq_u32 s{sStep}, 0
            s_cbranch_scc1 {lkm}
            s_sub_u32 s{sTmp}, s{sStep}, 1""")
            km_signal()
            A.label(lkm)
        l1 = A.newlabel("qk_skip"); l2 = A.newlabel("v_skip")
        A(f"s_cmp_lg_u32 s{sW}, 0")
        A(f"s_cbranch_scc1 {l1}")
        for pp in range(4):
            A(f"ds_read_b128 {v(vZt + pp*8, 4)}, v{vQR} offset:{pp*3200}")
            A(f"ds_read_b128 {v(vZt + pp*8 + 4, 4)}, v{vQR} offset:{pp*3200 + 16}")
        A(f"v_add_u32 v{vT}, 4096, v{vSP}")
        A("s_waitcnt lgkmcnt(4)")
        for h in range(4): A(f"v_pk_add_f32 {v(vZt + 2*h, 2)}, {v(vZt + 2*h, 2)}, {v(vZt + 8 + 2*h, 2)}")
        A("s_waitcnt lgkmcnt(0)")
        for h in range(4): A(f"v_pk_add_f32 {v(vZt + 16 + 2*h, 2)}, {v(vZt + 16 + 2*h, 2)}, {v(vZt + 24 + 2*h, 2)}")
        for h in range(4):
            A(f"v_pk_add_f32 {v(vZt + 2*h, 2)}, {v(vZt + 2*h, 2)}, {v(vZt + 16 + 2*h, 2)}")
        for h in range(4):
            A(f"v_cvt_pk_bf16_f32 v{vXq + h}, v{vZt + 2*h}, v{vZt + 2*h + 1}")
        A(f"v_mfma_f32_16x16x32_bf16 {v(vS+4,4)}, {v(vKs,4)}, {v(vXq,4)}, 0")
        for h in range(4):
            A(f"v_mov_b32_dpp v{vYq + h}, v{vXq + h} row_ror:8 row_mask:0xf bank_mask:0xf")
        A(f"v_mfma_f32_16x16x32_bf16 {v(vS+8,4)}, {v(vKs+4,4)}, {v(vXq,4)}, 0")
        A(f"v_mfma_f32_16x16x32_bf16 {v(vS,4)}, {v(vYq,4)}, {v(vXq,4)}, {v(vMask,4)}")
        A(f"s_mov_b64 exec, {s(sLoM,2)}")
        A(f"v_min_u32 v{vS+4}, -2, v{vS+4}")
        A(f"buffer_store_dwordx4 {v(vS+4,4)}, v{vSP}, {s(R,4)}, s{sA} offen offset:0{LOC}")
        A(f"v_min_u32 v{vS+8}, -2, v{vS+8}")
        A(f"buffer_store_dwordx4 {v(vS+8,4)}, v{vSP}, {s(R,4)}, s{sA} offen offset:2048{LOC}")
        A(f"v_min_u32 v{vS}, -2, v{vS}")
        A(f"buffer_store_dwordx4 {v(vS,4)}, v{vT}, {s(R,4)}, s{sA} offen offset:0{LOC}")
        A(f"s_mov_b64 exec, -1")
        A.fence()
        A.label(l1)
        stamp(12)
        A(f"s_cmp_lg_u32 s{sW}, 1")
        A(f"s_cbranch_scc1 {l2}")
        for pp in range(4):
            A(f"ds_read_b128 {v(vZt + pp*4, 4)}, v{vQR} offset:{pp*3200}")
        A("s_waitcnt lgkmcnt(2)")
        A(f"v_pk_add_f32 {v(vZt,2)}, {v(vZt,2)}, {v(vZt+4,2)}")
        A(f"v_pk_add_f32 {v(vZt+2,2)}, {v(vZt+2,2)}, {v(vZt+6,2)}")
        A("s_waitcnt lgkmcnt(0)")
        A(f"v_pk_add_f32 {v(vZt+8,2)}, {v(vZt+8,2)}, {v(vZt+12,2)}")
        A(f"v_pk_add_f32 {v(vZt+10,2)}, {v(vZt+10,2)}, {v(vZt+14,2)}")
        A(f"v_pk_add_f32 {v(vZt,2)}, {v(vZt,2)}, {v(vZt+8,2)}")
        A(f"v_pk_add_f32 {v(vZt+2,2)}, {v(vZt+2,2)}, {v(vZt+10,2)}")
        A(f"v_cvt_pk_bf16_f32 v{vKeep}, v{vZt}, v{vZt+1}")
        A(f"v_cvt_pk_bf16_f32 v{vKeep+1}, v{vZt+2}, v{vZt+3}")
        A(f"v_min_u32 v{vKeep}, -2, v{vKeep}")
        A(f"v_min_u32 v{vKeep+1}, -2, v{vKeep+1}")
        A(f"buffer_store_dword v{vKeep}, v{vPA0}, {s(R,4)}, s{sA} offen{LOC}")
        A(f"buffer_store_dword v{vKeep+1}, v{vPA1}, {s(R,4)}, s{sA} offen{LOC}")
        A.label(l2)
        A.fence()
        lastl = A.newlabel("last")
        A(f"s_cmp_eq_u32 s{sStep}, {cfg.nsteps-1}")
        A(f"s_cbranch_scc1 {lastl}")
        if cfg.await_ is not None:
            A("s_barrier")
            for _ in range(cfg.await_): A("s_nop 15")
        stamp(1)
        pa = A.newlabel("pollA")
        A.label(pa)
        for k in range(6):
            va = vL16 if k < 4 else vL16b
            A(bl("buffer_load_dwordx4", v(vL + 4*k, 4), va, sAw, (k % 4) * 1024))
        if not cfg.split_v:
            A(bl("buffer_load_dwordx4", v(vLv, 4), vL16b, sAw, 2048))
            A(bl("buffer_load_dwordx4", v(vLv + 4, 4), vL16b, sAw, 3072))
            A("s_waitcnt vmcnt(2)")
        else:
            A("s_waitcnt vmcnt(0)")
        check([vL + 4*k for k in range(6)], pa)
        if cfg.split_v:
            A(bl("buffer_load_dwordx4", v(vLv, 4), vL16b, sAw, 2048))
            A(bl("buffer_load_dwordx4", v(vLv + 4, 4), vL16b, sAw, 3072))
        stamp(2)
        for t, dst in ((0, 4), (1, 8), (2, 0)):
            for h in range(2):
                A(f"v_pk_add_f32 {v(vL + 8*t + 2*h, 2)}, {v(vL + 8*t + 2*h, 2)}, {v(vL + 8*t + 4 + 2*h, 2)}")
        for t, dst in ((0, 4), (1, 8), (2, 0)):
            for r in range(4):
                A(f"v_add_f32_dpp v{vS + dst + r}, v{vL + 8*t + r}, v{vL + 8*t + r} row_ror:8 row_mask:0xf bank_mask:0xf")
        stamp(20)
        A(f"v_max3_f32 v{vU}, v{vS+4}, v{vS+5}, v{vS+6}")
        A(f"v_max3_f32 v{vU2}, v{vS+7}, v{vS+8}, v{vS+9}")
        A(f"v_max3_f32 v{vU}, v{vU}, v{vS+10}, v{vS+11}")
        A(f"v_max3_f32 v{vU2}, v{vU2}, v{vS}, v{vS+1}")
        A(f"v_max3_f32 v{vU}, v{vU}, v{vS+2}, v{vS+3}")
        A(f"v_max_f32 v{vM}, v{vU}, v{vU2}")
        def xlane(op, reg, fill=None):
            A(f"v_mov_b32 v{vU}, v{reg}")
            if fill: A(fill.pop(0))
            A(f"v_permlane32_swap_b32 v{reg}, v{vU}")
            A(f"{op} v{reg}, v{reg}, v{vU}")
            A(f"v_mov_b32 v{vU}, v{reg}")
            if fill: A(fill.pop(0))
            A(f"v_permlane16_swap_b32 v{reg}, v{vU}")
            A(f"{op} v{reg}, v{reg}, v{vU}")
        xlane("v_max_f32", vM)
        A(f"v_mul_f32 v{vM}, s{sC}, v{vM}")
        for k in range(6):
            A(f"v_pk_fma_f32 {v(vS+2*k,2)}, {v(vS+2*k,2)}, {s(sC,2)}, {v(vM,2)} op_sel_hi:[1,1,0] neg_lo:[0,0,1] neg_hi:[0,0,1]")
        pv = A.newlabel("pollV"); pvb = A.newlabel("pollV_back")
        A("s_waitcnt vmcnt(0)")
        A(f"v_max_u32 v{vU2}, v{vLv}, v{vLv+4}")
        A(f"v_cmp_eq_u32 vcc, -1, v{vU2}")
        A(f"s_cbranch_vccnz {pv}")
        A.label(pvb)
        stamp(21)
        zm = []
        for ct in range(4):
            for b in range(2):
                zm.append(f"v_smfmac_f32_16x16x64_bf16 {v(vZm + ct*4, 4)}, {v(vLv + b*4, 4)}, {a(192 + (ct*2+b)*8, 8)}, v{vIdx}")
        order = [4, 5, 6, 7, 8, 9, 10, 11, 0, 1, 2, 3]
        for n_, k in enumerate(order):
            if zm: A(zm.pop(0))
            A(f"v_exp_f32 v{vS+k}, v{vS+k}")
        stamp(22)
        for k in range(4):
            A(f"v_cvt_pk_bf16_f32 v{vP+k}, v{vS+4+2*k}, v{vS+5+2*k}")
        A(f"v_cvt_pk_bf16_f32 v{vP+4}, v{vS}, v{vS+1}")
        A(f"v_cvt_pk_bf16_f32 v{vP+5}, v{vS+2}, v{vS+3}")
        for ct in range(4):
            A(f"v_mfma_f32_16x16x32_bf16 {v(vOut + ct*4, 4)}, {v(vZx + ct*4, 4)}, {v(vP,4)}, 0")
            if ct == 0:
                A(f"v_mov_b32 v{vU}, v{vP+4}")
                A(f"v_mov_b32 v{vU2}, v{vP+5}")
            if ct == 1:
                A(f"v_permlane32_swap_b32 v{vP+4}, v{vU}")
                A(f"v_permlane32_swap_b32 v{vP+5}, v{vU2}")
            if ct >= 2:
                c2 = (ct - 2) * 2
                for cc in (c2, c2 + 1):
                    A(f"v_cvt_pk_bf16_f32 v{vZmP + cc*2}, v{vZm + cc*4}, v{vZm + cc*4 + 1}")
                    A(f"v_cvt_pk_bf16_f32 v{vZmP + cc*2 + 1}, v{vZm + cc*4 + 2}, v{vZm + cc*4 + 3}")
        sums = [f"v_pk_add_f32 {v(vS,2)}, {v(vS,2)}, {v(vS+2,2)}",
                f"v_pk_add_f32 {v(vS+4,2)}, {v(vS+4,2)}, {v(vS+6,2)}",
                f"v_pk_add_f32 {v(vS+8,2)}, {v(vS+8,2)}, {v(vS+10,2)}",
                f"v_pk_add_f32 {v(vS,2)}, {v(vS,2)}, {v(vS+4,2)}",
                f"v_pk_add_f32 {v(vS,2)}, {v(vS,2)}, {v(vS+8,2)}",
                f"v_add_f32 v{vSum}, v{vS}, v{vS+1}",
                f"v_mov_b32 v{vU}, v{vSum}"]
        for ct in range(4):
            A(f"v_mfma_f32_16x16x16_bf16 {v(vOut + ct*4, 4)}, {v(vZmP + ct*2, 2)}, {v(vP+4,2)}, {v(vOut + ct*4, 4)}")
            for _ in range(2):
                if sums: A(sums.pop(0))
        stamp(23)
        A(f"v_permlane32_swap_b32 v{vSum}, v{vU}")
        A(f"v_add_f32 v{vSum}, v{vSum}, v{vU}")
        A(f"v_mov_b32 v{vU}, v{vSum}")
        A(f"v_permlane16_swap_b32 v{vSum}, v{vU}")
        A(f"v_add_f32 v{vSum}, v{vSum}, v{vU}")
        A(f"v_rcp_f32 v{vRi}, v{vSum}")
        for ct in range(2):
            for r in range(4):
                A(f"v_cndmask_b32 v{vOut + ct*4 + r}, v{vOut + (ct+2)*4 + r}, v{vOut + ct*4 + r}, {s(sLoM,2)}")
            for h in range(2):
                A(f"v_pk_mul_f32 {v(vOut + ct*4 + 2*h, 2)}, {v(vOut + ct*4 + 2*h, 2)}, {v(vRi,2)} op_sel_hi:[1,0]")
            A(f"ds_write_b128 v{vRW}, {v(vOut + ct*4, 4)} offset:{ct*64}")
        stamp(24)
        A("s_waitcnt lgkmcnt(0)")
        A("s_barrier")
        stamp(3)
        lr = A.newlabel("r_skip")
        A(f"s_cmp_ge_u32 s{sW}, 2")
        A(f"s_cbranch_scc1 {lr}")
        for w in range(4):
            A(f"ds_read2_b64 {v(vZt + w*4, 4)}, v{vRR + w} offset0:0 offset1:2")
        A("s_waitcnt lgkmcnt(2)")
        A(f"v_pk_add_f32 {v(vZt,2)}, {v(vZt,2)}, {v(vZt+4,2)}")
        A(f"v_pk_add_f32 {v(vZt+2,2)}, {v(vZt+2,2)}, {v(vZt+6,2)}")
        A("s_waitcnt lgkmcnt(0)")
        A(f"v_pk_add_f32 {v(vZt+8,2)}, {v(vZt+8,2)}, {v(vZt+12,2)}")
        A(f"v_pk_add_f32 {v(vZt+10,2)}, {v(vZt+10,2)}, {v(vZt+14,2)}")
        A(f"v_pk_add_f32 {v(vZt,2)}, {v(vZt,2)}, {v(vZt+8,2)}")
        A(f"v_pk_add_f32 {v(vZt+2,2)}, {v(vZt+2,2)}, {v(vZt+10,2)}")
        A(f"v_cvt_pk_bf16_f32 v{vZt}, v{vZt}, v{vZt+1}")
        A(f"v_cvt_pk_bf16_f32 v{vZt+1}, v{vZt+2}, v{vZt+3}")
        A(f"v_min_u32 v{vZt}, -2, v{vZt}")
        A(f"v_min_u32 v{vZt+1}, -2, v{vZt+1}")
        A(f"buffer_store_dwordx2 {v(vZt,2)}, v{vXW}, {s(R,4)}, s{sX} offen sc1")
        A(f"v_mov_b32 v{vS}, -1")
        A(f"v_mov_b32 v{vS+1}, -1")
        A(f"buffer_store_dwordx2 {v(vS,2)}, v{vXW}, {s(R,4)}, s{sRX} offen sc1")
        A.label(lr)
        A.fence()
        stamp(4)
        lk0 = A.newlabel("w0_skip"); lk1 = A.newlabel("w1_skip")
        A(f"s_cmp_lg_u32 s{sW}, 0")
        A(f"s_cbranch_scc1 {lk0}")
        for r in range(4): A(f"v_mov_b32 v{vS+r}, -1")
        A(f"s_mov_b64 exec, {s(sLoM,2)}")
        A(f"buffer_store_dwordx4 {v(vS,4)}, v{vSP}, {s(R,4)}, s{sRA} offen offset:0{LOC}")
        A(f"buffer_store_dwordx4 {v(vS,4)}, v{vSP}, {s(R,4)}, s{sRA} offen offset:2048{LOC}")
        A(f"v_add_u32 v{vT}, 4096, v{vSP}")
        A(f"buffer_store_dwordx4 {v(vS,4)}, v{vT}, {s(R,4)}, s{sRA} offen offset:0{LOC}")
        A(f"s_not_b64 exec, {s(sLoM,2)}")
        A(f"buffer_store_dwordx4 {v(vXq,4)}, v{vKVMk}, {s(R,4)}, s{sKVM} offen sc1")
        A(f"s_mov_b64 exec, -1")
        for x in ld_ks(): A(x)
        A.label(lk0)
        A(f"s_cmp_lg_u32 s{sW}, 1")
        A(f"s_cbranch_scc1 {lk1}")
        A(f"buffer_store_dword v{vSent}, v{vPA0}, {s(R,4)}, s{sRA} offen{LOC}")
        A(f"buffer_store_dword v{vSent}, v{vPA1}, {s(R,4)}, s{sRA} offen{LOC}")
        A(f"buffer_store_dwordx2 {v(vKeep,2)}, v{vKVM}, {s(R,4)}, s{sKVM} offen sc1")
        A.label(lk1)
        A.fence()
        A(f"buffer_store_dword v{vSent}, v{vBW}, {s(R,4)}, s{sRB} offen{LOC}")
        A(f"s_add_u32 s{sKVM}, s{sKVM}, {32*4096}")
        if not cfg.fake_pf: A(f"s_add_u32 s{sKX}, s{sKX}, {32*8192}")
        if cfg.kv_flags:
            lkv = A.newlabel("kv_ok"); lkp = A.newlabel("kv_poll")
            A(f"""v_readfirstlane_b32 s{sTmp}, v{vFl}
            s_cmp_ge_u32 s{sTmp}, 32
            s_cbranch_scc1 {lkv}""")
            A.label(lkp)
            A(f"""buffer_load_dword v{vFl}, v{vZ}, {s(R,4)}, s{sFl} offen sc1
            s_waitcnt vmcnt(0)
            v_readfirstlane_b32 s{sTmp}, v{vFl}
            s_cmp_ge_u32 s{sTmp}, 32
            s_cbranch_scc1 {lkv}
            s_sub_u32 s{sSpin}, s{sSpin}, 1
            s_cbranch_scc1 {exit_label}
            s_sleep 4
            s_branch {lkp}""")
            A.label(lkv)
            A.fence()
        zx([], not cfg.no_pf)
        if not cfg.fake_pf: A(f"s_add_u32 s{sVX}, s{sVX}, {32*8192}")
        for _ in range(cfg.xwait): A("s_nop 15")
        stamp(30)
        px = A.newlabel("pollX")
        A.fence()
        A.label(px)
        for gg in range(8):
            va = vXR if gg < 4 else vXR2
            A(f"buffer_load_dword v{vZt + gg}, v{va}, {s(R,4)}, s{sXr} offen offset:{(gg % 4) * 1024} sc1")
        A("s_waitcnt vmcnt(0)")
        check([vZt + gg for gg in range(8)], px)
        stamp(5)
        lo, hi = vZt + 8, vZt + 9
        for gg in range(8):
            A(f"v_dot2_f32_bf16 v{lo}, v{vZt + gg}, v{vOne}, {'0' if gg == 0 else 'v%d' % lo}")
            A(f"v_dot2_f32_bf16 v{hi}, v{vZt + gg}, v{vOneH}, {'0' if gg == 0 else 'v%d' % hi}")
        A(f"v_cvt_pk_bf16_f32 v{lo}, v{lo}, v{hi}")
        A(f"v_min_u32 v{lo}, -2, v{lo}")
        A(f"buffer_store_dword v{lo}, v{vBW}, {s(R,4)}, s{sB} offen{LOC}")
        stamp(6)
        A(f"s_mov_b32 s{sBwCur}, s{sBw}")
        A(f"s_add_u32 s{sStep}, s{sStep}, 1")
        for x in bases_ops() + zero_ops(): A(x)
        if cfg.kv_flags:
            A(f"""s_add_u32 s{sFl}, s{sStep}, 2
            s_lshr_b32 s{sFl}, s{sFl}, 2
            s_min_u32 s{sFl}, s{sFl}, 15
            s_lshl_b32 s{sFl}, s{sFl}, 7
            s_add_u32 s{sFl}, s{sFl}, {FLAG_OFF + FL_KV*128}
            buffer_load_dword v{vFl}, v{vZ}, {s(R,4)}, s{sFl} offen sc1""")
        for _ in range(cfg.bwait): A("s_nop 15")
        pb = A.newlabel("pollB")
        A.fence()
        A.label(pb)
        for kb in range(4):
            A(bl("buffer_load_dwordx4", v(vMem + kb*4, 4), vL16, sBwCur, kb * 1024))
        A("s_waitcnt vmcnt(0)")
        check([vMem + kb*4 for kb in range(4)], pb)
        stamp(7)
        A(f"s_branch {loop}")
        for rl, lab in retries:
            A.label(rl)
            A(f"s_sub_u32 s{sSpin}, s{sSpin}, 1")
            A(f"s_cbranch_scc1 {exit_label}")
            A(f"s_branch {lab}")
        A.label(pv)
        A(bl("buffer_load_dwordx4", v(vLv, 4), vL16b, sAw, 2048))
        A(bl("buffer_load_dwordx4", v(vLv + 4, 4), vL16b, sAw, 3072))
        A("s_waitcnt vmcnt(0)")
        A(f"v_max_u32 v{vU2}, v{vLv}, v{vLv+4}")
        A(f"v_cmp_eq_u32 vcc, -1, v{vU2}")
        A(f"s_cbranch_vccz {pvb}")
        A(f"s_sub_u32 s{sSpin}, s{sSpin}, 1")
        A(f"s_cbranch_scc1 {exit_label}")
        A(f"s_branch {pv}")
        A.label(lastl)
        lk5 = A.newlabel("last0"); lk6 = A.newlabel("last1")
        A(f"s_cmp_lg_u32 s{sW}, 0")
        A(f"s_cbranch_scc1 {lk5}")
        A(f"s_not_b64 exec, {s(sLoM,2)}")
        A(f"buffer_store_dwordx4 {v(vXq,4)}, v{vKVMk}, {s(R,4)}, s{sKVM} offen sc1")
        A(f"s_mov_b64 exec, -1")
        A.label(lk5)
        A(f"s_cmp_lg_u32 s{sW}, 1")
        A(f"s_cbranch_scc1 {lk6}")
        A(f"buffer_store_dwordx2 {v(vKeep,2)}, v{vKVM}, {s(R,4)}, s{sKVM} offen sc1")
        A.label(lk6)
        A("s_waitcnt vmcnt(0)")
        if cfg.km_flags:
            lkf = A.newlabel("km_last")
            A("s_barrier")
            A(f"s_cmp_lg_u32 s{sW}, 2")
            A(f"s_cbranch_scc1 {lkf}")
            A(f"s_mov_b32 s{sTmp}, s{sStep}")
            km_signal()
            A("s_waitcnt vmcnt(0)")
            A.label(lkf)
        A(f"s_branch {exit_label}")

    if cfg.dual:
        A(f"""s_getreg_b32 s{sTmp}, hwreg(HW_REG_XCC_ID, 0, 4)
        s_add_u32 s{sTmp}, s{sTmp}, 1
        s_lshl_b32 s{sTmp2}, s{s_g}, 4
        s_add_u32 s{sP}, s{sTmp2}, s{s_c}
        s_add_u32 s{sP}, s{sP}, {FL_XCC}
        s_lshl_b32 s{sP}, s{sP}, 7
        s_add_u32 s{sP}, s{sP}, {FLAG_OFF}
        v_mov_b32 v{vT}, s{sTmp}
        v_mov_b32 v{vT2}, 0
        buffer_store_dword v{vT}, v{vT2}, {s(R,4)}, s{sP} offen sc1
        s_add_u32 s{sP}, s{sTmp2}, {FL_XCC}
        s_lshl_b32 s{sP}, s{sP}, 7
        s_add_u32 s{sP}, s{sP}, {FLAG_OFF}
        v_and_b32 v{vT2}, 15, v{vLane}
        v_lshlrev_b32 v{vT2}, 7, v{vT2}""")
        lx = A.newlabel("xcc_poll"); lslow = A.newlabel("chain_slow")
        A.label(lx)
        A(f"""buffer_load_dword v{vU}, v{vT2}, {s(R,4)}, s{sP} offen sc1
        s_waitcnt vmcnt(0)
        v_cmp_eq_u32 vcc, 0, v{vU}
        s_cbranch_vccz {lx}_ok
        s_sub_u32 s{sSpin}, s{sSpin}, 1
        s_cbranch_scc1 {exit_label}
        s_sleep 4
        s_branch {lx}
        {lx}_ok:
        v_cmp_ne_u32 vcc, s{sTmp}, v{vU}
        s_cbranch_vccnz {lslow}""")
        emit_loop("")
        A.label(lslow)
        emit_loop(" sc1")
    else:
        emit_loop(LOC)
    return dict(sSt=sSt, sSpin=sSpin, sDbg=sDbg, sW=sW)
```

```python
from asmgen import *

class G:
    SRD_N = 40
    SRD_T = 44
    sNk = 48
    sTk = 49
    sTstep = 50
    sIter = 51
    sNrd = 52
    sNwr = 53
    sWN = 54
    sWT = 55
    sPitchN = 56
    sPitchT = 57
    sW = 58; sWTi = 59; sWNi = 60
    sTmp = 61; sTmp2 = 62
    vLane = 1
    vGN = 2
    vGT = 10
    vNb = 14
    vN = 18
    vTa = 22
    vTmp = 26; vTmp2 = 27
    vF = 32
    vE = 96
TBASE = 3 * 32768

def frag_regs(TI, TJ, P):
    base = G.vF + P * 32
    T = [base + 4 * t for t in range(TI)]
    N = [base + 16 + 4 * t for t in range(TJ)]
    return T, N

def setup_lane_consts(A):
    g = G
    A(f"""v_lshrrev_b32 v{g.vTmp}, 6, v0
    v_and_b32 v{g.vLane}, 63, v0
    v_readfirstlane_b32 s{g.sW}, v{g.vTmp}
    s_and_b32 s{g.sWTi}, s{g.sW}, 1
    s_lshr_b32 s{g.sWNi}, s{g.sW}, 1""")
    A(f"""v_lshrrev_b32 v{g.vTmp}, 5, v{g.vLane}
    v_lshlrev_b32 v{g.vTmp}, 3, v{g.vTmp}
    v_bfe_u32 v{g.vTmp2}, v{g.vLane}, 2, 2
    v_add_u32 v{g.vTmp}, v{g.vTmp}, v{g.vTmp2}
    v_lshlrev_b32 v{g.vTmp}, 9, v{g.vTmp}
    v_bfe_u32 v{g.vN}, v{g.vLane}, 4, 1
    v_lshlrev_b32 v{g.vN}, 5, v{g.vN}
    v_add_u32 v{g.vTmp}, v{g.vTmp}, v{g.vN}
    v_and_b32 v{g.vN}, 3, v{g.vLane}
    v_lshlrev_b32 v{g.vN}, 3, v{g.vN}
    v_add_u32 v{g.vTmp}, v{g.vTmp}, v{g.vN}
    s_lshl_b32 s{g.sTmp}, s{g.sWTi}, 8
    s_add_u32 s{g.sTmp}, s{g.sTmp}, {TBASE}
    v_add_u32 v{g.vTmp}, s{g.sTmp}, v{g.vTmp}""")
    for t in range(4):
        A(f"v_xor_b32 v{g.vN}, {t}, v{g.vTmp2}")
        A(f"v_lshl_add_u32 v{g.vTa + t}, v{g.vN}, 6, v{g.vTmp}")
    A(f"s_lshl_b32 s{g.sWT}, s{g.sW}, 12")
    A(f"s_add_u32 s{g.sWT}, s{g.sWT}, {TBASE}")

def setup_tile_consts(A, TJ):
    g = G
    A(f"""v_and_b32 v{g.vTmp}, 31, v{g.vLane}
    s_mul_i32 s{g.sTmp}, s{g.sWNi}, {32*TJ}
    v_add_u32 v{g.vTmp2}, s{g.sTmp}, v{g.vTmp}
    v_lshlrev_b32 v{g.vTmp2}, 7, v{g.vTmp2}
    v_bfe_u32 v{g.vTmp}, v{g.vLane}, 1, 3
    v_lshrrev_b32 v{g.vN}, 5, v{g.vLane}""")
    for s4 in range(4):
        A(f"v_add_u32 v{g.vN+1}, {2*s4}, v{g.vN}")
        A(f"v_xor_b32 v{g.vN+1}, v{g.vN+1}, v{g.vTmp}")
        A(f"v_lshl_add_u32 v{g.vNb + s4}, v{g.vN+1}, 4, v{g.vTmp2}")
    nper = 2 * TJ
    half = nper // 2
    A(f"""v_lshrrev_b32 v{g.vTmp}, 3, v{g.vLane}
    s_mul_i32 s{g.sTmp}, s{g.sW}, {8*nper}
    v_add_u32 v{g.vTmp}, s{g.sTmp}, v{g.vTmp}
    v_mul_lo_u32 v{g.vTmp}, v{g.vTmp}, s{g.sPitchN}
    v_lshrrev_b32 v{g.vTmp2}, 4, v{g.vLane}
    v_and_b32 v{g.vN}, 7, v{g.vLane}
    s_lshl_b32 s{g.sTmp2}, s{g.sPitchN}, 3""")
    for q in range(nper):
        A(f"v_add_u32 v{g.vN+1}, {4*(q&1)}, v{g.vTmp2}")
        A(f"v_xor_b32 v{g.vN+1}, v{g.vN+1}, v{g.vN}")
        A(f"v_lshl_add_u32 v{g.vGN + q}, v{g.vN+1}, 4, v{g.vTmp}")
        if q % half: A(f"v_subrev_u32 v{g.vGN + q}, {1024*(q % half)}, v{g.vGN + q}")
        if q < nper - 1: A(f"v_add_u32 v{g.vTmp}, s{g.sTmp2}, v{g.vTmp}")
    A(f"s_mul_i32 s{g.sWN}, s{g.sW}, {1024*nper}")
    A(f"""v_lshrrev_b32 v{g.vTmp2}, 5, v{g.vLane}
    s_lshl_b32 s{g.sTmp}, s{g.sW}, 3
    v_add_u32 v{g.vTmp}, s{g.sTmp}, v{g.vTmp2}
    v_mul_lo_u32 v{g.vTmp}, v{g.vTmp}, s{g.sPitchT}
    v_and_b32 v{g.vN}, 31, v{g.vLane}
    s_lshl_b32 s{g.sTmp2}, s{g.sPitchT}, 1""")
    for q in range(4):
        A(f"v_add_u32 v{g.vN+1}, {(2*q)&3}, v{g.vTmp2}")
        A(f"v_lshlrev_b32 v{g.vN+1}, 2, v{g.vN+1}")
        A(f"v_xor_b32 v{g.vN+1}, v{g.vN+1}, v{g.vN}")
        A(f"v_lshl_add_u32 v{g.vGT + q}, v{g.vN+1}, 4, v{g.vTmp}")
        if q: A(f"v_subrev_u32 v{g.vGT + q}, {1024*q}, v{g.vGT + q}")
        if q < 3: A(f"v_add_u32 v{g.vTmp}, s{g.sTmp2}, v{g.vTmp}")
    A(f"s_lshl_b32 s{g.sTstep}, s{g.sPitchT}, 5")

def gen_mainloop(A, TI, TJ, swap, tag, nsc1=False):
    g = G
    assert TI == 4
    nper = 2 * TJ; half = nper // 2
    NSLOT = 64 * TJ * 128
    Gsz = 4 + half
    def acc(tT, tN): return a((tT * TJ + tN) * 16, 16)
    def dmaT(slot):
        r = [f"s_add_u32 m0, s{g.sWT}, {slot * 16384}"]
        r += [f"buffer_load_dwordx4 v{g.vGT + q}, {s(g.SRD_T,4)}, s{g.sTk} offen offset:{q*1024} lds" for q in range(4)]
        r += [f"s_add_u32 s{g.sTk}, s{g.sTk}, s{g.sTstep}"]
        return r
    def dmaN(h):
        r = [f"s_add_u32 m0, s{g.sNwr}, {h * half * 1024}"]
        r += [f"buffer_load_dwordx4 v{g.vGN + h*half + q}, {s(g.SRD_N,4)}, s{g.sNk} offen offset:{q*1024}{' sc1' if nsc1 else ''} lds" for q in range(half)]
        if h == 1: r += [f"s_add_u32 s{g.sNk}, s{g.sNk}, 128"]
        return r
    def reads(hs, sp, P):
        T, N = frag_regs(TI, TJ, P)
        s4 = (hs & 1) * 2 + sp
        r = []
        for t in range(max(TI, TJ)):
            if t < TJ: r.append(f"ds_read_b128 {v(N[t],4)}, v{g.vN + s4} offset:{t*4096}")
            if t < TI:
                for u in range(2):
                    off = (hs & 3) * 16384 + (16 * sp + 4 * u) * 512
                    r.append(f"ds_read_b64_tr_b16 {v(T[t] + 2*u, 2)}, v{g.vTa + t} offset:{off}")
        return r
    def mfmas(P, first=False):
        T, N = frag_regs(TI, TJ, P)
        r = []
        for tT in range(TI):
            for tN in range(TJ):
                x, y = (v(T[tT],4), v(N[tN],4)) if not swap else (v(N[tN],4), v(T[tT],4))
                c = "0" if first else acc(tT, tN)
                r.append(f"v_mfma_f32_32x32x16_bf16 {acc(tT,tN)}, {x}, {y}, {c}")
        return r
    def interleave(ms, fill, lead=0):
        fill = list(fill)
        n = len(ms)
        per = -(-len(fill) // max(1, n - lead - 1)) if fill else 0
        for i, m in enumerate(ms):
            A(m)
            if i >= lead:
                for _ in range(per):
                    if fill: A(fill.pop(0))
        for x in fill: A(x)
    def adv_read_slot():
        return [f"s_add_u32 s{g.sNrd}, s{g.sNrd}, {NSLOT}",
                f"s_cmp_eq_u32 s{g.sNrd}, {3*NSLOT}",
                f"s_cselect_b32 s{g.sNrd}, 0, s{g.sNrd}"] + \
               [f"v_add_u32 v{g.vN + i}, s{g.sNrd}, v{g.vNb + i}" for i in range(4)]
    def kstep0(hs, first=False):
        A("s_waitcnt lgkmcnt(0)")
        interleave(mfmas(0, first), reads(hs, 1, 1))
    def kstep1(hs, mode, vm, lskip=None):
        ms = mfmas(1)
        A("s_waitcnt lgkmcnt(0)")
        if mode == "end":
            for m in ms: A(m)
            return
        A(ms[0]); A(ms[1])
        pre = []
        if hs & 1:
            pre.append(f"s_add_u32 s{g.sNwr}, s{g.sNrd}, s{g.sWN}")
            pre += adv_read_slot()
        for x in pre: A(x)
        A(f"s_waitcnt vmcnt({vm})")
        A("s_barrier")
        fill = []
        rd = reads(hs + 1, 0, 0)
        if mode == "main":
            dT = dmaT(hs & 3)
            dN = dmaN(0 if (hs & 1) else 1)
            if lskip:
                A(ms[2])
                for x in dT: A(x)
                A(f"s_cmp_eq_u32 s{g.sIter}, 1")
                A(f"s_cbranch_scc1 {lskip}")
                for x in dN: A(x)
                A.label(lskip)
                interleave(ms[3:], rd)
                return
            fill = []
            d = dT + dN
            while rd or d:
                if rd: fill.append(rd.pop(0))
                if d: fill.append(d.pop(0))
        else:
            fill = rd
        interleave(ms[2:], fill)

    A(f"s_mov_b32 s{g.sNk}, 0")
    A(f"s_mov_b32 s{g.sTk}, 0")
    A(f"s_mov_b32 s{g.sNwr}, s{g.sWN}")
    for x in dmaN(0): A(x)
    for x in dmaT(0) + dmaN(1): A(x)
    A(f"s_add_u32 s{g.sNwr}, s{g.sWN}, {NSLOT}")
    for x in dmaT(1) + dmaN(0): A(x)
    for x in dmaT(2) + dmaN(1): A(x)
    A(f"s_add_u32 s{g.sNwr}, s{g.sWN}, {2*NSLOT}")
    for x in dmaT(3) + dmaN(0): A(x)
    A(f"s_mov_b32 s{g.sNrd}, 0")
    for i in range(4): A(f"v_mov_b32 v{g.vN + i}, v{g.vNb + i}")
    A(f"s_waitcnt vmcnt({3*Gsz})")
    A("s_barrier")
    for x in reads(0, 0, 0): A(x)
    lp = f"gl_{tag}"; lmid = f"gm_{tag}"
    kstep0(0, first=True)
    A(f"s_branch {lmid}")
    A.fence()
    A.label(lp)
    for hs in range(4):
        if hs > 0: kstep0(hs)
        else:
            kstep0(0)
            A.label(lmid)
        kstep1(hs, "main", 2 * Gsz, lskip=(f"gs_{tag}" if hs == 3 else None))
    A(f"s_sub_u32 s{g.sIter}, s{g.sIter}, 1")
    A(f"s_cmp_lg_u32 s{g.sIter}, 0")
    A(f"s_cbranch_scc1 {lp}")
    kstep0(0); kstep1(0, "tail", Gsz + 4)
    kstep0(1); kstep1(1, "tail", 4)
    kstep0(2); kstep1(2, "tail", 0)
    kstep0(3); kstep1(3, "end", 0)
    A.fence()

def pack_tile(A, areg, P, pre=None):
    E = G.vE + 64
    for r in range(16): A(f"v_accvgpr_read_b32 v{E + r}, a{areg + r}")
    if pre: pre(E)
    for q in range(8): A(f"v_cvt_pk_bf16_f32 v{P + q}, v{E + 2*q}, v{E + 2*q + 1}")
    A(f"v_permlane32_swap_b32 v{P}, v{P+2}")
    A(f"v_permlane32_swap_b32 v{P+1}, v{P+3}")
    A(f"v_permlane32_swap_b32 v{P+4}, v{P+6}")
    A(f"v_permlane32_swap_b32 v{P+5}, v{P+7}")

import struct
def f32bits(x): return struct.unpack("<I", struct.pack("<f", x))[0]
LOG2E = 1.4426950408889634

def lane_rowcol(A, vdst, pitch, tmp):
    g = G
    A(f"v_and_b32 v{tmp}, 31, v{g.vLane}")
    A(f"v_mul_u32_u24 v{vdst}, {pitch}, v{tmp}")
    A(f"v_lshrrev_b32 v{tmp}, 5, v{g.vLane}")
    A(f"v_lshl_add_u32 v{vdst}, v{tmp}, 4, v{vdst}")

def epi_qkv(A, TJ, R, sBase):
    g = G
    A(f"""v_bfe_u32 v{g.vTmp}, v{g.vLane}, 4, 1
    v_lshlrev_b32 v{g.vTmp}, 12, v{g.vTmp}
    v_lshrrev_b32 v{g.vTmp2}, 5, v{g.vLane}
    v_lshl_add_u32 v{g.vTmp}, v{g.vTmp2}, 8, v{g.vTmp}
    v_and_b32 v{g.vTmp2}, 15, v{g.vLane}
    v_lshl_add_u32 v{g.vTmp}, v{g.vTmp2}, 4, v{g.vTmp}""")
    for tN in range(TJ):
        for tT in range(4):
            P = G.vE + ((tN * 4 + tT) % 4) * 8
            pack_tile(A, (tT * TJ + tN) * 16, P)
            A(f"buffer_store_dwordx4 {v(P,4)}, v{g.vTmp}, {s(R,4)}, s{sBase} offen offset:{tT*1024} sc1")
            A(f"buffer_store_dwordx4 {v(P+4,4)}, v{g.vTmp}, {s(R,4)}, s{sBase} offen offset:{tT*1024 + 512} sc1")
        if tN < TJ - 1: A(f"s_add_u32 s{sBase}, s{sBase}, {1 << 18}")

def epi_gelu(A, TJ, R, sBase, RB, sBias):
    g = G
    c0 = -2.0 * LOG2E * 0.7978845608028654
    c1 = c0 * 0.044715
    sC0, sC1 = g.sTmp, g.sTmp2
    vB = G.vE + 32
    lane_rowcol(A, g.vTmp, 7168, g.vTmp2)
    A(f"v_lshrrev_b32 v{g.vTmp2}, 5, v{g.vLane}")
    A(f"v_lshlrev_b32 v{g.vTmp2}, 3, v{g.vTmp2}")
    A(f"s_mov_b32 s{sC0}, {f32bits(c0):#x}")
    A(f"s_mov_b32 s{sC1}, {f32bits(c1):#x}")
    for tT in range(4):
        for q in range(4):
            A(f"buffer_load_dwordx2 {v(vB + 16 + 2*q, 2)}, v{g.vTmp2}, {s(RB,4)}, s{sBias} offen offset:{(32*tT + 8*q)*2}")
        A("s_waitcnt vmcnt(0)")
        for q in range(8):
            A(f"v_lshlrev_b32 v{vB + 2*q}, 16, v{vB + 16 + q}")
            A(f"v_and_b32 v{vB + 2*q + 1}, 0xffff0000, v{vB + 16 + q}")
        def pre(E):
            Y = E + 16
            for r in range(0, 16, 2):
                A(f"v_pk_add_f32 {v(E+r,2)}, {v(E+r,2)}, {v(vB+r,2)}")
            for r in range(0, 16, 2):
                A(f"v_pk_mul_f32 {v(Y+r,2)}, {v(E+r,2)}, {v(E+r,2)}")
            for r in range(16):
                A(f"v_fma_f32 v{Y+r}, v{Y+r}, s{sC1}, v{g.vNb}")
            for r in range(0, 16, 2):
                A(f"v_pk_mul_f32 {v(Y+r,2)}, {v(Y+r,2)}, {v(E+r,2)}")
            for r in range(16): A(f"v_exp_f32 v{Y+r}, v{Y+r}")
            for r in range(16): A(f"v_add_f32 v{Y+r}, 1.0, v{Y+r}")
            for r in range(16): A(f"v_rcp_f32 v{Y+r}, v{Y+r}")
            for r in range(0, 16, 2):
                A(f"v_pk_mul_f32 {v(E+r,2)}, {v(E+r,2)}, {v(Y+r,2)}")
        if tT == 0: A(f"v_mov_b32 v{g.vNb}, s{sC0}")
        for tN in range(TJ):
            P = G.vE + (tN % 2) * 8
            pack_tile(A, (tT * TJ + tN) * 16, P, pre)
            if tN == 0:
                va = g.vTmp
            else:
                A(f"v_add_u32 v{g.vNb+1}, {tN*32*7168}, v{g.vTmp}")
                va = g.vNb + 1
            A(f"buffer_store_dwordx4 {v(P,4)}, v{va}, {s(R,4)}, s{sBase} offen offset:{tT*64} sc1")
            A(f"buffer_store_dwordx4 {v(P+4,4)}, v{va}, {s(R,4)}, s{sBase} offen offset:{tT*64 + 32} sc1")

def epi_silu(A, TJ, R, sBase, RB, sBias):
    g = G
    vB = G.vE + 32
    lane_rowcol(A, g.vTmp, 2048, g.vTmp2)
    A(f"v_and_b32 v{g.vTmp2}, 31, v{g.vLane}")
    A(f"v_lshlrev_b32 v{g.vTmp2}, 1, v{g.vTmp2}")
    for tT in range(4):
        A(f"buffer_load_ushort v{vB + tT}, v{g.vTmp2}, {s(RB,4)}, s{sBias} offen offset:{64*tT}")
    A("s_waitcnt vmcnt(0)")
    for tT in range(4): A(f"v_lshlrev_b32 v{vB + tT}, 16, v{vB + tT}")
    A(f"s_mov_b32 s{g.sTmp}, {f32bits(-LOG2E):#x}")
    for tT in range(4):
        def pre(E, tT=tT):
            Y = E + 16
            for r in range(16): A(f"v_add_f32 v{E+r}, v{E+r}, v{vB + tT}")
            for r in range(16): A(f"v_mul_f32 v{Y+r}, s{g.sTmp}, v{E+r}")
            for r in range(16): A(f"v_exp_f32 v{Y+r}, v{Y+r}")
            for r in range(16): A(f"v_add_f32 v{Y+r}, 1.0, v{Y+r}")
            for r in range(16): A(f"v_rcp_f32 v{Y+r}, v{Y+r}")
            for r in range(0, 16, 2):
                A(f"v_pk_mul_f32 {v(E+r,2)}, {v(E+r,2)}, {v(Y+r,2)}")
        A(f"v_add_u32 v{g.vNb+1}, {tT*32*2048}, v{g.vTmp}")
        for tN in range(TJ):
            P = G.vE + (tN % 2) * 8
            pack_tile(A, (tT * TJ + tN) * 16, P, pre)
            A(f"buffer_store_dwordx4 {v(P,4)}, v{g.vNb+1}, {s(R,4)}, s{sBase} offen offset:{tN*64} sc1")
            A(f"buffer_store_dwordx4 {v(P+4,4)}, v{g.vNb+1}, {s(R,4)}, s{sBase} offen offset:{tN*64 + 32} sc1")

def epi_out(A, TJ, R, sG, RX, RO, sXo):
    g = G
    lane_rowcol(A, g.vTmp, 2048, g.vTmp2)
    vX = G.vE + 16; vGt = G.vE + 24; vW = G.vE + 32
    for tN in range(TJ):
        A(f"v_add_u32 v{g.vNb+1}, {tN*32*2048}, v{g.vTmp}")
        for tT in range(4):
            P = G.vE + (tT % 2) * 8
            for h in range(2):
                A(f"buffer_load_dwordx4 {v(vX + 4*h, 4)}, v{g.vNb+1}, {s(RX,4)}, s{sXo} offen offset:{tT*64 + 32*h}")
                A(f"buffer_load_dwordx4 {v(vGt + 4*h, 4)}, v{g.vNb+1}, {s(R,4)}, s{sG} offen offset:{tT*64 + 32*h} sc1")
            pack_tile(A, (tT * TJ + tN) * 16, P)
            A("s_waitcnt vmcnt(0)")
            for q in range(8):
                sl, sh, gl, gh, xl, xh = vW, vW+1, vW+2, vW+3, vW+4, vW+5
                A(f"v_lshlrev_b32 v{sl}, 16, v{P+q}")
                A(f"v_and_b32 v{sh}, 0xffff0000, v{P+q}")
                A(f"v_lshlrev_b32 v{gl}, 16, v{vGt+q}")
                A(f"v_and_b32 v{gh}, 0xffff0000, v{vGt+q}")
                A(f"v_pk_mul_f32 {v(sl,2)}, {v(sl,2)}, {v(gl,2)}")
                A(f"v_cvt_pk_bf16_f32 v{gl}, v{sl}, v{sh}")
                A(f"v_lshlrev_b32 v{sl}, 16, v{gl}")
                A(f"v_and_b32 v{sh}, 0xffff0000, v{gl}")
                A(f"v_lshlrev_b32 v{xl}, 16, v{vX+q}")
                A(f"v_and_b32 v{xh}, 0xffff0000, v{vX+q}")
                A(f"v_pk_add_f32 {v(sl,2)}, {v(sl,2)}, {v(xl,2)}")
                A(f"v_cvt_pk_bf16_f32 v{P+q}, v{sl}, v{sh}")
            A(f"buffer_store_dwordx4 {v(P,4)}, v{g.vNb+1}, {s(RO,4)}, s{sXo} offen offset:{tT*64}")
            A(f"buffer_store_dwordx4 {v(P+4,4)}, v{g.vNb+1}, {s(RO,4)}, s{sXo} offen offset:{tT*64 + 32}")
```

```python
MB = 1 << 20
XN_OFF   = 0
HT_OFF   = 4 * MB
QX_OFF   = 8 * MB
KX_OFF   = 24 * MB
VX_OFF   = 40 * MB
U_OFF    = 56 * MB
G_OFF    = 64 * MB
OX_OFF   = 68 * MB
KVM_OFF  = 84 * MB
HOPA_OFF = 92 * MB
HOPX_OFF = 93 * MB
HOPB_OFF = 94 * MB
FLAG_OFF = 95 * MB
WS_BYTES = 256 * MB
NSLOT = 4
HOPA_HEAD = 8192
HOPA_SLOT = 8 * 4 * HOPA_HEAD
HOPX_SLOT = 16 * 8 * 1024
HOPB_SLOT = 8 * 16384
KA = dict(x=0, mem0=8, Wq=16, Wk=24, Wv=32, Wo=40, seglen=48, Bx=56, w1=64, b1=72, w2=80, b2=88, out=96, dbg=104, ws=112)
```

```python
from asmgen import *
from layout import *
import struct
def f32bits(x): return struct.unpack("<I", struct.pack("<f", x))[0]

def rnd_bf16(A, dst, src, tmp):
    A(f"v_cvt_pk_bf16_f32 v{tmp}, v{src}, v{src}")
    A(f"v_lshlrev_b32 v{dst}, 16, v{tmp}")

def wave_sum(A, reg, tmp):
    for ctl in ("quad_perm:[1,0,3,2]", "quad_perm:[2,3,0,1]", "row_half_mirror", "row_mirror"):
        A(f"v_add_f32_dpp v{reg}, v{reg}, v{reg} {ctl} row_mask:0xf bank_mask:0xf")
    A(f"v_mov_b32 v{tmp}, v{reg}")
    A(f"v_permlane16_swap_b32 v{reg}, v{tmp}")
    A(f"v_add_f32 v{reg}, v{reg}, v{tmp}")
    A(f"v_mov_b32 v{tmp}, v{reg}")
    A(f"v_permlane32_swap_b32 v{reg}, v{tmp}")
    A(f"v_add_f32 v{reg}, v{reg}, v{tmp}")

def layernorm16(A, X, T, sInv, sEps):
    S, U, M = T, T + 1, T + 2
    A(f"v_add_f32 v{S}, v{X}, v{X+1}")
    for i in range(2, 16): A(f"v_add_f32 v{S}, v{S}, v{X+i}")
    wave_sum(A, S, U)
    A(f"v_mul_f32 v{M}, s{sInv}, v{S}")
    A(f"v_sub_f32 v{U}, v{X}, v{M}")
    A(f"v_mul_f32 v{S}, v{U}, v{U}")
    for i in range(1, 16):
        A(f"v_sub_f32 v{U}, v{X+i}, v{M}")
        A(f"v_fmac_f32 v{S}, v{U}, v{U}")
    wave_sum(A, S, U)
    A(f"v_mul_f32 v{S}, s{sInv}, v{S}")
    rnd_bf16(A, S, S, U)
    A(f"v_add_f32 v{S}, s{sEps}, v{S}")
    rnd_bf16(A, S, S, U)
    A(f"v_sqrt_f32 v{S}, v{S}")
    rnd_bf16(A, S, S, U)
    A(f"v_rcp_f32 v{S}, v{S}")
    rnd_bf16(A, M, M, U)
    for i in range(0, 16, 2):
        A(f"v_sub_f32 v{X+i}, v{X+i}, v{M}")
        A(f"v_sub_f32 v{X+i+1}, v{X+i+1}, v{M}")
        A(f"v_cvt_pk_bf16_f32 v{U}, v{X+i}, v{X+i+1}")
        A(f"v_lshlrev_b32 v{X+i}, 16, v{U}")
        A(f"v_and_b32 v{X+i+1}, 0xffff0000, v{U}")
        A(f"v_mul_f32 v{X+i}, v{X+i}, v{S}")
        A(f"v_mul_f32 v{X+i+1}, v{X+i+1}, v{S}")
        A(f"v_cvt_pk_bf16_f32 v{T + 4 + i//2}, v{X+i}, v{X+i+1}")
        A(f"v_lshlrev_b32 v{X+i}, 16, v{T + 4 + i//2}")
        A(f"v_and_b32 v{X+i+1}, 0xffff0000, v{T + 4 + i//2}")
    return T + 4

def gen_k1(A, name):
    A.raw(kernel_header(name))
    end = name + "_end"
    A(f"""s_cmp_ge_u32 s2, 256
    s_cbranch_scc1 {end}
    s_load_dwordx2 s[4:5], s[0:1], {KA['x']}
    s_load_dwordx2 s[6:7], s[0:1], {KA['ws']}
    v_lshrrev_b32 v2, 6, v0
    v_and_b32 v1, 63, v0
    v_readfirstlane_b32 s8, v2
    s_mov_b32 s20, {f32bits(1.0/1024):#x}
    s_mov_b32 s21, {f32bits(1e-5):#x}
    s_waitcnt lgkmcnt(0)
    s_mov_b32 s12, s4
    s_mov_b32 s13, s5
    s_mov_b32 s14, {2048*2048}
    s_mov_b32 s15, 0x20000
    s_mov_b32 s16, s6
    s_mov_b32 s17, s7
    s_mov_b32 s18, {WS_BYTES}
    s_mov_b32 s19, 0x20000""")
    A(f"""v_mov_b32 v8, -1
    v_mov_b32 v9, -1
    v_mov_b32 v10, -1
    v_mov_b32 v11, -1
    v_lshlrev_b32 v3, 4, v0
    s_mul_i32 s9, s2, 12288
    s_add_u32 s9, s9, {HOPA_OFF}
    buffer_store_dwordx4 v[8:11], v3, s[16:19], s9 offen
    s_add_u32 s9, s9, 4096
    buffer_store_dwordx4 v[8:11], v3, s[16:19], s9 offen
    s_add_u32 s9, s9, 4096
    buffer_store_dwordx4 v[8:11], v3, s[16:19], s9 offen
    v_mov_b32 v12, 0
    v_lshlrev_b32 v4, 2, v0
    s_lshl_b32 s9, s2, 10
    s_add_u32 s9, s9, {FLAG_OFF}
    buffer_store_dword v12, v4, s[16:19], s9 offen""")
    A(f"""s_lshl_b32 s9, s2, 3
    s_lshl_b32 s10, s8, 1
    s_add_u32 s9, s9, s10
    s_lshl_b32 s9, s9, 11
    v_lshlrev_b32 v2, 4, v1""")
    for r in range(2):
        A(f"buffer_load_dwordx4 v[{16 + r*8}:{19 + r*8}], v2, s[12:15], s9 offen offset:{r*2048}")
        A(f"buffer_load_dwordx4 v[{20 + r*8}:{23 + r*8}], v2, s[12:15], s9 offen offset:{r*2048 + 1024}")
    A(f"""s_lshl_b32 s11, s8, 12
    v_add_u32 v5, s11, v2
    s_add_u32 s10, s9, {XN_OFF}
    s_waitcnt vmcnt(0)""")
    X = 40; T = 60
    for r in range(2):
        for i in range(8):
            A(f"v_lshlrev_b32 v{X + 2*i}, 16, v{16 + r*8 + i}")
            A(f"v_and_b32 v{X + 2*i + 1}, 0xffff0000, v{16 + r*8 + i}")
        Pk = layernorm16(A, X, T, 20, 21)
        A(f"buffer_store_dwordx4 {v(Pk,4)}, v2, s[16:19], s10 offen offset:{r*2048}")
        A(f"buffer_store_dwordx4 {v(Pk+4,4)}, v2, s[16:19], s10 offen offset:{r*2048 + 1024}")
        A("s_nop 1")
        Pk = layernorm16(A, X, T, 20, 21)
        A(f"ds_write_b128 v5, {v(Pk,4)} offset:{r*2048}")
        A(f"ds_write_b128 v5, {v(Pk+4,4)} offset:{r*2048 + 1024}")
    A("s_waitcnt lgkmcnt(0)")
    A("s_barrier")
    A(f"""v_bfe_u32 v6, v1, 2, 2
    v_lshlrev_b32 v6, 11, v6
    v_lshrrev_b32 v7, 4, v1
    v_lshl_add_u32 v6, v7, 5, v6
    v_and_b32 v7, 3, v1
    v_lshl_add_u32 v6, v7, 3, v6
    s_lshl_b32 s11, s8, 9
    v_add_u32 v6, s11, v6
    s_lshl_b32 s11, s8, 8
    v_add_u32 v7, s11, v1
    v_lshlrev_b32 v7, 12, v7
    s_lshl_b32 s10, s2, 4
    s_add_u32 s10, s10, {HT_OFF}""")
    for it in range(4):
        A(f"ds_read_b64_tr_b16 v[{16 + 4*it}:{17 + 4*it}], v6 offset:{it*128}")
        A(f"ds_read_b64_tr_b16 v[{18 + 4*it}:{19 + 4*it}], v6 offset:{it*128 + 8192}")
    A("s_waitcnt lgkmcnt(0)")
    for it in range(4):
        A(f"buffer_store_dwordx4 v[{16 + 4*it}:{19 + 4*it}], v7, s[16:19], s10 offen")
        if it < 3: A(f"s_add_u32 s10, s10, {64*4096}")
    A.label(end)
    A("s_endpgm")
```

```python
import sys; sys.path.insert(0, "tools")
from asmgen import *
from layout import *
import gemm, chain3, ln, att
from gemm import G
from chain3 import FL_KV, FL_Q, FL_U, FL_G, FL_ATT, FL_KM, FL_XCC

NAME = "recurrent_scan__memory_aug_recurrent_mem_tr__mixer_token_mlp__prompt"
K1 = "ln_init_kernel"
K2 = NAME + "_kernel"
NW = 128
MAXITEMS = 16
T_QH, T_QF, T_G3, T_G4, T_ATT, T_G5 = 0, 1, 2, 3, 4, 5
def item(ty, p1, p2, p3=0): return ty | (p1 << 4) | (p2 << 10) | (p3 << 16)

HEADER = open("cdna_kernels/" + NAME + ".s.ref").read().split("; Override launch geometry")[0]

def schedule(step_us=2.45, t0=9.0):
    dur = {T_QH: 11.0, T_QF: 19.5, T_G3: 21.0, T_G4: 33.0, T_ATT: 6.0, T_G5: 37.0}
    items = []
    for m in range(2):
        for ty in (1, 2):
            for n in range(16): items.append((T_QH, m, n, ty))
    g3 = [(T_G3, dt, ft, 0) for dt in range(8) for ft in range(14)]
    kvf = [(T_QF, m, n, ty) for m in range(1, 8) for ty in (1, 2) for n in range(16)]
    qf = [(T_QF, m, n, 0) for m in range(8) for n in range(16)]
    g4 = [(T_G4, dt, st, 0) for st in range(8) for dt in range(8)]
    order = items + g3[:64] + kvf[:32] + g3[64:] + kvf[32:96] + g4[:0]
    rest_kv = kvf[96:]
    order += qf[:32] + rest_kv + g4 + qf[32:]
    tail = []
    for j in range(16):
        tail += [(T_ATT, j, gq, 0) for gq in range(8)]
        tail += [(T_G5, j, dt, 0) for dt in range(4)]
    order += tail
    free = [4.0] * NW
    done = {}
    lists = [[] for _ in range(NW)]
    def ready(it):
        ty, p1, p2, p3 = it
        r = 0.0
        if ty == T_G4: r = max(done[(T_G3, p1, f, 0)] for f in range(14))
        if ty == T_ATT:
            r = t0 + step_us * (4 * p1 + 3.3) + 1.0
            m = p1 // 2
            r = max([r] + [done[k] for k in done if (k[0] == T_QF and k[1] == m) or (k[0] == T_QH and k[1] == p1)])
        if ty == T_G5:
            r = max([done[(T_ATT, p1, g_, 0)] for g_ in range(8)] + [done[(T_G4, d, p1 // 2, 0)] for d in range(8)])
        return r
    for it in order:
        r = ready(it)
        cand = [w for w in range(NW) if len(lists[w]) < MAXITEMS - 1]
        w = min(cand, key=lambda w: (max(free[w], r), -free[w] if free[w] <= r else free[w]))
        st = max(free[w], r)
        free[w] = st + dur[it[0]]
        done[it] = free[w]
        lists[w].append(it)
    return lists, max(free), done

def wait_flag(A, R, sIdx, target, exit_label, sSpin, tag):
    g = G
    lw = A.newlabel("wf")
    A(f"""s_lshl_b32 s{g.sTmp}, s{sIdx}, 7
    s_add_u32 s{g.sTmp}, s{g.sTmp}, {FLAG_OFF}""")
    A.label(lw)
    A(f"""buffer_load_dword v{g.vTmp}, v255, {s(R,4)}, s{g.sTmp} offen sc1
    s_waitcnt vmcnt(0)
    v_readfirstlane_b32 s{g.sTmp2}, v{g.vTmp}
    s_cmp_ge_u32 s{g.sTmp2}, {target}
    s_cbranch_scc1 {lw}_ok
    s_sub_u32 s{sSpin}, s{sSpin}, 1
    s_cbranch_scc1 {exit_label}
    s_sleep 16
    s_branch {lw}
    {lw}_ok:""")
    A.fence()

def signal(A, R, idx_sgprs):
    g = G
    ls = A.newlabel("sg")
    A(f"""s_waitcnt vmcnt(0)
    s_barrier
    s_cmp_lg_u32 s{g.sW}, 0
    s_cbranch_scc1 {ls}
    v_mov_b32 v{g.vTmp}, 1
    s_mov_b64 exec, 1""")
    for si in idx_sgprs:
        A(f"""s_lshl_b32 s{g.sTmp}, s{si}, 7
        s_add_u32 s{g.sTmp}, s{g.sTmp}, {FLAG_OFF}
        buffer_atomic_add v{g.vTmp}, v255, {s(R,4)}, s{g.sTmp} offen sc1""")
    A("s_mov_b64 exec, -1")
    A.label(ls)
    A.fence()

def gen_worker(A, exit_label, lists):
    g = G
    sX, sWq, sWk, sWv, sWo, sWs, sW1, sB1, sW2, sB2, sOut = 4, 6, 8, 10, 12, 14, 16, 18, 20, 22, 24
    sTab = 26; R = 28; RB = 32; RO = 36
    sItem, sTy, sP1, sP2, sP3, sBase, sI1, sI2, sSpin, sOff = 80, 81, 82, 83, 84, 85, 86, 87, 88, 89
    A(f"""s_load_dwordx2 {s(sX,2)}, s[0:1], {KA['x']}
    s_load_dwordx2 {s(sWq,2)}, s[0:1], {KA['Wq']}
    s_load_dwordx2 {s(sWk,2)}, s[0:1], {KA['Wk']}
    s_load_dwordx2 {s(sWv,2)}, s[0:1], {KA['Wv']}
    s_load_dwordx2 {s(sWo,2)}, s[0:1], {KA['Wo']}
    s_load_dwordx2 {s(sWs,2)}, s[0:1], {KA['ws']}
    s_load_dwordx2 {s(sW1,2)}, s[0:1], {KA['w1']}
    s_load_dwordx2 {s(sB1,2)}, s[0:1], {KA['b1']}
    s_load_dwordx2 {s(sW2,2)}, s[0:1], {KA['w2']}
    s_load_dwordx2 {s(sB2,2)}, s[0:1], {KA['b2']}
    s_load_dwordx2 {s(sOut,2)}, s[0:1], {KA['out']}
    s_getpc_b64 {s(sTab,2)}
    Lpc:
    s_sub_u32 s3, s2, 128
    s_lshl_b32 s3, s3, 6
    s_add_u32 s{sTab}, s{sTab}, sched_table-Lpc
    s_addc_u32 s{sTab+1}, s{sTab+1}, 0
    s_add_u32 s{sTab}, s{sTab}, s3
    s_addc_u32 s{sTab+1}, s{sTab+1}, 0
    s_mov_b32 s{sSpin}, {1 << 22}
    v_mov_b32 v255, 0""")
    gemm.setup_lane_consts(A)
    A(f"""s_waitcnt lgkmcnt(0)
    s_mov_b32 s{R}, s{sWs}
    s_mov_b32 s{R+1}, s{sWs+1}
    s_mov_b32 s{R+2}, {WS_BYTES}
    s_mov_b32 s{R+3}, 0x20000""")
    A.label("w_next")
    A(f"""s_load_dword s{sItem}, {s(sTab,2)}, 0
    s_add_u32 s{sTab}, s{sTab}, 4
    s_addc_u32 s{sTab+1}, s{sTab+1}, 0
    s_waitcnt lgkmcnt(0)
    s_cmp_eq_u32 s{sItem}, -1
    s_cbranch_scc1 {exit_label}
    s_and_b32 s{sTy}, s{sItem}, 7
    s_bfe_u32 s{sP1}, s{sItem}, 0x60004
    s_bfe_u32 s{sP2}, s{sItem}, 0x6000a
    s_bfe_u32 s{sP3}, s{sItem}, 0x20010
    s_cmp_eq_u32 s{sTy}, {T_ATT}
    s_cbranch_scc1 w_att
    s_cmp_eq_u32 s{sTy}, {T_G3}
    s_cbranch_scc1 w_g3
    s_cmp_eq_u32 s{sTy}, {T_G4}
    s_cbranch_scc1 w_g4
    s_cmp_eq_u32 s{sTy}, {T_G5}
    s_cbranch_scc1 w_g5""")
    def srd(dst, ptr, soff, size):
        A(f"""s_add_u32 s{dst}, s{ptr}, s{soff}
        s_addc_u32 s{dst+1}, s{ptr+1}, 0
        s_sub_u32 s{dst+2}, {size}, s{soff}
        s_mov_b32 s{dst+3}, 0x20000""")
    A(f"""s_cmp_eq_u32 s{sP3}, 1
    s_cselect_b32 s64, s{sWk}, s{sWq}
    s_cselect_b32 s65, s{sWk+1}, s{sWq+1}
    s_cmp_eq_u32 s{sP3}, 2
    s_cselect_b32 s64, s{sWv}, s64
    s_cselect_b32 s65, s{sWv+1}, s65
    s_lshl_b32 s{sOff}, s{sP2}, 9""")
    srd(g.SRD_T, 64, sOff, 1024 * 8192)
    A(f"""s_mov_b32 s{g.sPitchN}, 2048
    s_mov_b32 s{g.sPitchT}, 8192
    s_mov_b32 s{g.sIter}, 7
    s_cmp_eq_u32 s{sTy}, {T_QF}
    s_cbranch_scc1 w_qf
    s_lshl_b32 s{sOff}, s{sP1}, 18
    s_add_u32 s{sOff}, s{sOff}, {XN_OFF}""")
    srd(g.SRD_N, sWs, sOff, WS_BYTES)
    A("s_branch w_h0")
    A.label("w_qf")
    A(f"""s_lshl_b32 s{sOff}, s{sP1}, 19
    s_add_u32 s{sOff}, s{sOff}, {XN_OFF}""")
    srd(g.SRD_N, sWs, sOff, WS_BYTES)
    gemm.setup_tile_consts(A, 4)
    gemm.gen_mainloop(A, 4, 4, False, "f")
    def qkv_base(TJ):
        A(f"""s_lshl_b32 s{sBase}, s{sP3}, 24
        s_add_u32 s{sBase}, s{sBase}, {QX_OFF}
        s_lshl_b32 s{sOff}, s{sP2}, 1
        s_add_u32 s{sOff}, s{sOff}, s{g.sWTi}
        s_lshl_b32 s{sOff}, s{sOff}, 13
        s_add_u32 s{sBase}, s{sBase}, s{sOff}
        s_mul_i32 s{sOff}, s{sP1}, {2*TJ}
        s_mul_i32 s{sI1}, s{g.sWNi}, {TJ}
        s_add_u32 s{sOff}, s{sOff}, s{sI1}
        s_lshl_b32 s{sOff}, s{sOff}, 18
        s_add_u32 s{sBase}, s{sBase}, s{sOff}""")
    qkv_base(4)
    gemm.epi_qkv(A, 4, R, sBase)
    A(f"""s_cmp_eq_u32 s{sP3}, 0
    s_cselect_b32 s{sI1}, {FL_Q}, {FL_KV}
    s_lshl_b32 s{sOff}, s{sP1}, 1
    s_add_u32 s{sI1}, s{sI1}, s{sOff}
    s_add_u32 s{sI2}, s{sI1}, 1""")
    signal(A, R, [sI1, sI2])
    A("s_branch w_next")
    A.label("w_g3")
    A(f"s_lshl_b32 s{sOff}, s{sP2}, 9")
    srd(g.SRD_T, sW1, sOff, 2048 * 7168)
    A(f"""s_lshl_b32 s{sOff}, s{sP1}, 19
    s_add_u32 s{sOff}, s{sOff}, {HT_OFF}""")
    srd(g.SRD_N, sWs, sOff, WS_BYTES)
    A(f"""s_mov_b32 s{g.sPitchN}, 4096
    s_mov_b32 s{g.sPitchT}, 7168
    s_mov_b32 s{g.sIter}, 15
    s_branch w_h0""")
    A.label("w_g5")
    A(f"s_add_u32 s{sI1}, s{sP1}, {FL_ATT}")
    wait_flag(A, R, sI1, 8, exit_label, sSpin, "g5a")
    A(f"s_lshr_b32 s{sI1}, s{sP1}, 1")
    A(f"s_add_u32 s{sI1}, s{sI1}, {FL_G}")
    wait_flag(A, R, sI1, 8, exit_label, sSpin, "g5b")
    A(f"s_lshl_b32 s{sOff}, s{sP2}, 9")
    srd(g.SRD_T, sWo, sOff, 4096 * 2048)
    A(f"""s_lshl_b32 s{sOff}, s{sP1}, 20
    s_add_u32 s{sOff}, s{sOff}, {OX_OFF}""")
    srd(g.SRD_N, sWs, sOff, WS_BYTES)
    A(f"""s_mov_b32 s{g.sPitchN}, 8192
    s_mov_b32 s{g.sPitchT}, 2048
    s_mov_b32 s{g.sIter}, 31""")
    A.label("w_h0")
    gemm.setup_tile_consts(A, 2)
    gemm.gen_mainloop(A, 4, 2, False, "h", nsc1=True)
    A(f"""s_cmp_eq_u32 s{sTy}, {T_G3}
    s_cbranch_scc1 w_g3e
    s_cmp_eq_u32 s{sTy}, {T_G5}
    s_cbranch_scc1 w_g5e""")
    qkv_base(2)
    gemm.epi_qkv(A, 2, R, sBase)
    A(f"""s_cmp_eq_u32 s{sP3}, 0
    s_cselect_b32 s{sI1}, {FL_Q}, {FL_KV}
    s_add_u32 s{sI1}, s{sI1}, s{sP1}""")
    signal(A, R, [sI1])
    A("s_branch w_next")
    A.label("w_g3e")
    A(f"""s_lshl_b32 s{sOff}, s{sP1}, 1
    s_add_u32 s{sOff}, s{sOff}, s{g.sWNi}
    s_mul_i32 s{sBase}, s{sOff}, {64*7168}
    s_lshl_b32 s{sOff}, s{sP2}, 1
    s_add_u32 s{sOff}, s{sOff}, s{g.sWTi}
    s_lshl_b32 s{sOff}, s{sOff}, 8
    s_add_u32 s{sBase}, s{sBase}, s{sOff}
    s_add_u32 s{sBase}, s{sBase}, {U_OFF}
    s_mov_b32 s{RB}, s{sB1}
    s_mov_b32 s{RB+1}, s{sB1+1}
    s_mov_b32 s{RB+2}, {3584*2}
    s_mov_b32 s{RB+3}, 0x20000""")
    gemm.epi_gelu(A, 2, R, sBase, RB, sOff)
    A(f"s_add_u32 s{sI1}, s{sP1}, {FL_U}")
    signal(A, R, [sI1])
    A("s_branch w_next")
    A.label("w_g5e")
    A(f"""s_lshl_b32 s{sOff}, s{sP1}, 1
    s_add_u32 s{sOff}, s{sOff}, s{g.sWNi}
    s_lshl_b32 s{sOff}, s{sOff}, 17
    s_lshl_b32 s{sBase}, s{sP2}, 1
    s_add_u32 s{sBase}, s{sBase}, s{g.sWTi}
    s_lshl_b32 s{sBase}, s{sBase}, 8
    s_add_u32 s{sOff}, s{sOff}, s{sBase}
    s_add_u32 s{sBase}, s{sOff}, {G_OFF}
    s_mov_b32 s{RB}, s{sX}
    s_mov_b32 s{RB+1}, s{sX+1}
    s_mov_b32 s{RB+2}, {2048*2048}
    s_mov_b32 s{RB+3}, 0x20000
    s_mov_b32 s{RO}, s{sOut}
    s_mov_b32 s{RO+1}, s{sOut+1}
    s_mov_b32 s{RO+2}, {2048*2048}
    s_mov_b32 s{RO+3}, 0x20000""")
    gemm.epi_out(A, 2, R, sBase, RB, RO, sOff)
    A("s_waitcnt vmcnt(0)")
    A("s_barrier")
    A("s_branch w_next")
    A.label("w_g4")
    A(f"s_add_u32 s{sI1}, s{sP1}, {FL_U}")
    wait_flag(A, R, sI1, 14, exit_label, sSpin, "g4")
    A(f"s_lshl_b32 s{sOff}, s{sP2}, 9")
    srd(g.SRD_T, sW2, sOff, 3584 * 4096)
    A(f"""s_mul_i32 s{sOff}, s{sP1}, {128*7168}
    s_add_u32 s{sOff}, s{sOff}, {U_OFF}""")
    srd(g.SRD_N, sWs, sOff, WS_BYTES)
    A(f"""s_mov_b32 s{g.sPitchN}, 7168
    s_mov_b32 s{g.sPitchT}, 4096
    s_mov_b32 s{g.sIter}, 27""")
    gemm.setup_tile_consts(A, 2)
    gemm.gen_mainloop(A, 4, 2, True, "s", nsc1=True)
    A(f"""s_lshl_b32 s{sOff}, s{sP2}, 1
    s_add_u32 s{sOff}, s{sOff}, s{g.sWTi}
    s_lshl_b32 s{sBase}, s{sOff}, 18
    s_lshl_b32 s{sOff}, s{sOff}, 8
    s_lshl_b32 s{sI1}, s{sP1}, 1
    s_add_u32 s{sI1}, s{sI1}, s{g.sWNi}
    s_lshl_b32 s{sI1}, s{sI1}, 7
    s_add_u32 s{sBase}, s{sBase}, s{sI1}
    s_add_u32 s{sBase}, s{sBase}, {G_OFF}
    s_mov_b32 s{RB}, s{sB2}
    s_mov_b32 s{RB+1}, s{sB2+1}
    s_mov_b32 s{RB+2}, {2048*2}
    s_mov_b32 s{RB+3}, 0x20000""")
    gemm.epi_silu(A, 2, R, sBase, RB, sOff)
    A(f"s_add_u32 s{sI1}, s{sP2}, {FL_G}")
    signal(A, R, [sI1])
    A("s_branch w_next")
    A.label("w_att")
    A(f"s_add_u32 s{sI1}, s{sP1}, {FL_KV}")
    wait_flag(A, R, sI1, 32, exit_label, sSpin, "a1")
    A(f"s_add_u32 s{sI1}, s{sP1}, {FL_Q}")
    wait_flag(A, R, sI1, 16, exit_label, sSpin, "a2")
    A(f"""s_lshl_b32 s{sI1}, s{sP2}, 4
    s_add_u32 s{sI1}, s{sI1}, s{sP1}
    s_add_u32 s{sI1}, s{sI1}, {FL_KM}""")
    wait_flag(A, R, sI1, 16, exit_label, sSpin, "a3")
    att.gen_att(A, R, sP1, sP2, g.sW, g.vLane, "x")
    A(f"s_add_u32 s{sI1}, s{sP1}, {FL_ATT}")
    signal(A, R, [sI1])
    gemm.setup_lane_consts(A)
    A("s_branch w_next")

def build(chain_kw=None, sched_kw=None, only=None, chain_on=True, name=None):
    lists, makespan, done = schedule(**(sched_kw or {}))
    if only is not None: lists = [[it for it in l if it[0] in only] for l in lists]
    A = Asm()
    A.raw(HEADER.rstrip() + "\n" +
          f"; @launch kernel={K1} grid=(256,1,1) block=(256,1,1) lds=16384\n"
          f"; @launch kernel={K2} grid=(256,1,1) block=(256,1,1) lds=163840\n"
          '.amdgcn_target "amdgcn-amd-amdhsa--gfx950"\n.text')
    ln.gen_k1(A, K1)
    A.fence()
    A.raw(kernel_header(K2))
    A("""s_cmp_ge_u32 s2, 256
    s_cbranch_scc1 L_exit
    s_cmp_ge_u32 s2, 128
    s_cbranch_scc1 L_worker
    CHAIN_GATE
    s_and_b32 s18, s2, 7
    s_lshr_b32 s19, s2, 3""")
    A.lines = [("  s_branch L_exit" if not chain_on else "  s_nop 0") if ln.strip() == "CHAIN_GATE" else ln for ln in A.lines]
    cfg = chain3.ChainCfg(); cfg.fast_local = True; cfg.dual = True; cfg.kv_flags = True; cfg.km_flags = True
    cfg.await_ = 0; cfg.split_v = True
    for k_, v_ in (chain_kw or {}).items(): setattr(cfg, k_, v_)
    chain3.gen_chain(A, cfg, 18, 19, "L_exit")
    A.label("L_worker")
    A.fence()
    gen_worker(A, "L_exit", lists)
    A.label("L_exit")
    A("s_endpgm")
    A.raw(".p2align 6\n.type sched_table,@object\nsched_table:")
    for l in lists:
        words = [item(*it) for it in l] + [0xFFFFFFFF] * (MAXITEMS - len(l))
        A.raw(".long " + ", ".join(f"{w:#x}" for w in words))
    A.raw(f".size sched_table, {NW*MAXITEMS*4}")
    A.raw('.section .rodata,"a"\n.p2align 6\n' + kernel_desc(K1, vgpr=128, sgpr=32, accum=128) + ".p2align 6\n" + kernel_desc(K2))
    return A.text(), makespan

if __name__ == "__main__":
    if len(sys.argv) > 1 and sys.argv[1] == "w1":
        txt, ms = build(only=(T_QH, T_QF, T_G3, T_G4), chain_on=False)
        open("w1.s", "w").write(txt); sys.exit(0)
    if len(sys.argv) > 1 and sys.argv[1] == "w2":
        txt, ms = build(only=(T_QH, T_QF, T_G3, T_G4), chain_on=True)
        open("w2.s", "w").write(txt); sys.exit(0)
    txt, ms = build()
    out = "cdna_kernels/" + NAME + ".s"
    open(out, "w").write(txt)
    print("written", len(txt), "bytes; estimated makespan", ms)
```
